```python
import torch

def _softmax(x, axis=-1):
    return torch.softmax(x, dim=axis)

def _gelu(x):
    return torch.nn.functional.gelu(x, approximate='tanh')

def _silu(x):
    return torch.nn.functional.silu(x)

def _sigmoid(x):
    return torch.sigmoid(x)

def _layernorm(x, axis=-1, eps=1e-05):
    m = x.mean(dim=axis, keepdim=True)
    v = x.var(dim=axis, keepdim=True, unbiased=False)
    return (x - m) / torch.sqrt(v + eps)

def _scatter_add(tgt, idx, src, axis=0):
    return tgt.clone().index_add_(axis, idx, src)

def _segment_sum(src, seg, n):
    out = torch.zeros((n,) + src.shape[1:], dtype=src.dtype)
    return out.index_add_(0, seg, src)

def _pad(x, pw):
    flat = tuple((v for pair in reversed(pw) for v in pair))
    return torch.nn.functional.pad(x, flat)
kernel_name = 'recurrent_scan__memory_aug_recurrent_mem_tr__moe_arch_mod__prompt'

def setup_inputs():

    _w = lambda a: (lambda t: t.to(torch.bfloat16) if t.is_floating_point() else t)(torch.as_tensor(a))

    def _A_setup():
        B, S, Dm = (1, 2048, 640)
        H, Dh = (32, 128)
        M, seg = (8, 32)
        seg = min(seg, S)
        S = S // seg * seg
        return {'x': _w((lambda *s: torch.randn(*s, dtype=torch.bfloat16) * 0.05)(B, S, Dm)), 'mem0': _w((lambda *s: torch.randn(*s, dtype=torch.bfloat16) * 0.2)(B, M, Dm)), 'Wq': _w((lambda *s: torch.randn(*s, dtype=torch.bfloat16) * 1.6)(Dm, H, Dh) * Dm ** (-0.5)), 'Wk': _w((lambda *s: torch.randn(*s, dtype=torch.bfloat16) * 1.6)(Dm, H, Dh) * Dm ** (-0.5)), 'Wv': _w((lambda *s: torch.randn(*s, dtype=torch.bfloat16) * 0.2)(Dm, H, Dh) * Dm ** (-0.5)), 'Wo': _w((lambda *s: torch.randn(*s, dtype=torch.bfloat16) * 0.2)(H, Dh, Dm) * (H * Dh) ** (-0.5)), 'seg_len': seg}
    _A_in = _A_setup()

    def _B_setup():
        B, S, D, F, C = (1, 2048, 640, 1728, 8)
        return {'x': _w((lambda *s: torch.randn(*s, dtype=torch.bfloat16) * 0.05)(B, S, D)), 'w_r': _w((lambda *s: torch.randn(*s, dtype=torch.bfloat16) * 0.2)(D)), 'w_gate': _w((lambda *s: torch.randn(*s, dtype=torch.bfloat16) * 0.1)(D, F)), 'w_up': _w((lambda *s: torch.randn(*s, dtype=torch.bfloat16) * 0.1)(D, F)), 'w_down': _w((lambda *s: torch.randn(*s, dtype=torch.bfloat16) * 0.1)(F, D))}
    _B_in = _B_setup()
    return {'A_x': _A_in['x'], 'A_mem0': _A_in['mem0'], 'A_Wq': _A_in['Wq'], 'A_Wk': _A_in['Wk'], 'A_Wv': _A_in['Wv'], 'A_Wo': _A_in['Wo'], 'A_seg_len': _A_in['seg_len'], 'B_x': _B_in['x'], 'B_w_r': _B_in['w_r'], 'B_w_gate': _B_in['w_gate'], 'B_w_up': _B_in['w_up'], 'B_w_down': _B_in['w_down']}

def reference(A_x, A_mem0, A_Wq, A_Wk, A_Wv, A_Wo, A_seg_len, B_x, B_w_r, B_w_gate, B_w_up, B_w_down):

    def _A_ref(x, mem0, Wq, Wk, Wv, Wo, seg_len):
        B, S, Dm = x.shape
        H, Dh = (Wq.shape[1], Wq.shape[2])
        M = mem0.shape[1]
        scale = Dh ** (-0.5)
        n_seg = S // seg_len
        L = M + seg_len
        idx = torch.arange(L)
        mask = (idx[:, None] < M) | (idx[:, None] >= idx[None, :])
        mem = mem0
        outs = []
        for s in range(n_seg):
            xs = x[:, s * seg_len:(s + 1) * seg_len, :].clone()
            h = torch.concatenate([mem, xs], axis=1)
            q = torch.einsum('btd,dhe->bhte', h, Wq)
            k = torch.einsum('btd,dhe->bhte', h, Wk)
            v = torch.einsum('btd,dhe->bhte', h, Wv)
            scores = torch.einsum('bhqe,bhke->bhqk', q, k) * scale
            scores = torch.where(mask[None, None], scores, -1000000000.0)
            p = _softmax(scores, axis=-1)
            o = torch.einsum('bhqk,bhke->bhqe', p, v)
            o = torch.einsum('bhte,hed->btd', o, Wo)
            mem = o[:, :M, :].clone()
            outs.append(o[:, M:, :])
        return torch.concatenate(outs, axis=1)

    def _B_ref(x, w_r, w_gate, w_up, w_down):
        B, S, D = x.shape
        C = 8
        r = x @ w_r
        idx = torch.argsort(-r, axis=-1)[:, :C]
        idx_e = (lambda x, n, axis: torch.repeat_interleave(x, n, dim=axis))(idx.reshape(B, C, 1), D, axis=2)
        x_sel = (lambda x, i, axis: torch.take_along_dim(x, i, dim=axis))(x, idx_e, axis=1)
        g = _silu(x_sel @ w_gate)
        u = x_sel @ w_up
        y = g * u @ w_down
        r_sel = _sigmoid((lambda x, i, axis: torch.take_along_dim(x, i, dim=axis))(r, idx, axis=1))
        y = y * r_sel.reshape(B, C, 1)
        b_off = (torch.arange(B) * S).reshape(B, 1)
        flat_idx = (idx + b_off).reshape(B * C)
        zero = (x * 0.0).reshape(B * S, D)
        upd = _scatter_add(zero, flat_idx, y.reshape(B * C, D), axis=0)
        return x + upd.reshape(B, S, D)
    x = A_x
    xn = _layernorm(x, axis=-1)
    s = _A_ref(xn, A_mem0, A_Wq, A_Wk, A_Wv, A_Wo, A_seg_len)
    g = _silu(_B_ref(xn, B_w_r, B_w_gate, B_w_up, B_w_down))
    return x + s * g
```

```python
class Asm:
    def __init__(self):
        self.lines = []
        self.uid = 0
    def __call__(self, s=""):
        for l in s.split("\n"):
            l = l.strip()
            if l:
                self.lines.append(("" if l.endswith(":") else "    ") + l)
    def label(self, base):
        self.uid += 1
        return f"L_{getattr(self, chr(107)+chr(110), str())[:4]}{base}_{self.uid}"
    def text(self):
        return "\n".join(self.lines) + "\n"

def vr(b, n=1, f="v"):
    return f"{f}{b}" if n == 1 else f"{f}[{b}:{b+n-1}]"
def sr(b, n=1):
    return vr(b, n, "s")
def ar(b, n=1):
    return vr(b, n, "a")

HEADER = """.amdgcn_target "amdgcn-amd-amdhsa--gfx950"
.text
"""
def kernel_begin(name):
    return f""".globl {name}
.p2align 8
.type {name},@function
{name}:
"""
def kernel_desc(name, vgpr, accum, sgpr=102):
    return f""".section .rodata,"a"
.p2align 6
.amdhsa_kernel {name}
  .amdhsa_next_free_vgpr {vgpr}
  .amdhsa_next_free_sgpr {sgpr}
  .amdhsa_accum_offset {accum}
  .amdhsa_group_segment_fixed_size 0
  .amdhsa_kernarg_size 120
  .amdhsa_user_sgpr_count 2
  .amdhsa_user_sgpr_kernarg_segment_ptr 1
  .amdhsa_system_sgpr_workgroup_id_x 1
  .amdhsa_float_denorm_mode_32 3
.end_amdhsa_kernel
.text
"""
```

```python
from asmlib import *
XN=0x0; GA=0x280000; RA=0x500000; HM=0x510000; FL=0x520000
RSB=0x600000; AGL=0x6C0000; AGR=0x800000
QX=0x1000000; KX=0x2000000; VX=0x3000000; OA=0x4000000; XM=0x5000000; VM=0x5800000
F_LN=FL; F_G=FL+64*128; F_PUB=FL+256*128; F_O=FL+320*128; NFL=352
WS="s[4:7]"; SA_="s[8:11]"; SB_="s[12:15]"; SC_="s[16:19]"; DBG="s[20:23]"
sW=24; sJ=25
SPIN=400000
LOG2E=1.4426950408889634
import struct
def f2u(x): return "0x%08x" % struct.unpack("<I", struct.pack("<f", x))[0]
def srd(a, d, koff, nbytes):
    a(f"s_load_dwordx2 s[{d}:{d+1}], s[0:1], {koff}\n s_mov_b32 s{d+2}, {hex(nbytes)}\n s_mov_b32 s{d+3}, 0x00020000")
def prologue(a, ngrid):
    a(f"s_cmp_ge_u32 s2, {ngrid}\n s_cbranch_scc1 L_exit_{a.kn}")
    srd(a, 4, 112, 0x10000000); srd(a, 20, 104, 256)
    a(f"v_lshrrev_b32 v1, 6, v0\n v_and_b32 v0, 63, v0\n v_readfirstlane_b32 s{sW}, v1\n s_waitcnt lgkmcnt(0)")
def spin(a, loads, check, cnt, name):
    l = a.label(name); ok = a.label(name + "ok")
    a(f"s_mov_b32 s{cnt}, 0\n {l}:")
    a(loads); a("s_waitcnt vmcnt(0)"); a(check)
    a(f"""s_cbranch_vccz {ok}
    s_add_u32 s{cnt}, s{cnt}, 1
    s_cmp_lt_u32 s{cnt}, {SPIN}
    s_cbranch_scc0 L_exit_{a.kn}
    s_sleep 2
    s_branch {l}
    {ok}:""")
def bf_unpack(a, lo, hi, src):
    a(f"v_lshlrev_b32 v{lo}, 16, v{src}\n v_and_b32 v{hi}, 0xffff0000, v{src}")
def red8(a, v, t, op="v_add_f32"):
    a(f"""{op}_dpp v{v}, v{v}, v{v} quad_perm:[1,0,3,2] row_mask:0xf bank_mask:0xf
    {op}_dpp v{v}, v{v}, v{v} quad_perm:[2,3,0,1] row_mask:0xf bank_mask:0xf
    {op}_dpp v{v}, v{v}, v{v} row_half_mirror row_mask:0xf bank_mask:0xf""")
def silu(a, dst, x, t):
    a(f"""v_mul_f32 v{t}, {f2u(-LOG2E)}, v{x}
    v_exp_f32 v{t}, v{t}
    v_add_f32 v{t}, 1.0, v{t}
    v_rcp_f32 v{t}, v{t}
    v_mul_f32 v{dst}, v{x}, v{t}""")

def stamp(a, i):
    if getattr(a, "stamp_on", None): a(f"s_memrealtime s[{78+2*i}:{79+2*i}]\n s_waitcnt lgkmcnt(0)")
```

```python
import re
TRANS = ("v_exp_f32","v_log_f32","v_rcp_f32","v_rsq_f32","v_sqrt_f32","v_sin_f32","v_cos_f32","v_rcp_iflag_f32")
def regs(op):
    op = op.strip()
    if op.startswith("-"): op = op[1:]
    if op.startswith("|"): op = op.strip("|")
    m = re.fullmatch(r"([vas])(\d+)", op)
    if m: return {(m.group(1), int(m.group(2)))}
    m = re.fullmatch(r"([vas])\[(\d+):(\d+)\]", op)
    if m: return {(m.group(1), i) for i in range(int(m.group(2)), int(m.group(3))+1)}
    if op == "vcc": return {("s","vcc")}
    if op in ("vcc_lo","vcc_hi"): return {("s","vcc")}
    if op == "m0": return {("s","m0")}
    if op in ("exec","exec_lo","exec_hi"): return {("s","exec")}
    return set()
class I: pass
def parse(line):
    t = line.split(";")[0].strip()
    if not t or t.endswith(":") or t.startswith("."): return None
    p = t.split(None, 1); mn = p[0]; rest = p[1] if len(p) > 1 else ""
    ops = [o.strip() for o in rest.split(",")] if rest else []
    mods = ""
    if ops:
        q = ops[-1].split(None, 1)
        ops[-1] = q[0]; mods = q[1] if len(q) > 1 else ""
    i = I(); i.mn = mn; i.ops = ops; i.mods = mods; i.w = set(); i.r = set(); i.k = "other"; i.states = 1
    R = [regs(o) for o in ops]
    if mn == "s_nop": i.states = int(ops[0]) + 1; i.k = "nop"
    elif mn.startswith("v_mfma") or mn.startswith("v_smfmac"):
        i.k = "mfma"; i.w = R[0]; i.passes = 8 if "32x32" in mn else 4
        if mn.startswith("v_smfmac"): i.ab = R[1] | R[2] | R[3]; i.c = R[0]
        else: i.ab = R[1] | R[2]; i.c = R[3]
        i.r = i.ab | i.c
    elif mn.startswith("v_"):
        i.k = "valu"; i.trans = mn.replace("_e32","").replace("_e64","") in TRANS
        i.dpp = ("dpp" in mn) or ("quad_perm" in mods) or ("row_" in mods)
        i.perm = mn.startswith("v_permlane"); i.rdl = mn.startswith("v_readlane") or mn.startswith("v_readfirstlane")
        i.opsel = ("op_sel" in mods and not mn.startswith("v_pk_")) or "sdwa" in mn
        i.w = set(R[0]); i.r = set().union(*R[1:]) if len(R) > 1 else set()
        if mn.startswith("v_permlane") and "swap" in mn: i.w |= R[1]; i.r |= R[0]
        if "_co_" in mn: i.w |= R[1]
        if mn.startswith(("v_fmac","v_mac","v_dot2c","v_writelane")) or i.dpp or "d16" in mn or i.opsel: i.r |= R[0]
    elif mn.startswith("ds_"):
        i.k = "ds"
        if mn.startswith(("ds_read","ds_bpermute","ds_permute","ds_swizzle")): i.w = R[0]; i.r = set().union(*R[1:])
        else: i.r = set().union(*R)
    elif mn.startswith(("buffer_","global_")):
        i.k = "vmem"; i.lds = " lds" in (" " + mods); i.wide = False
        if mn.startswith("buffer_load"):
            if i.lds: i.r = set().union(*R)
            else: i.w = R[0]; i.r = set().union(*R[1:])
        elif mn.startswith("buffer_store") or mn.startswith("buffer_atomic"):
            i.r = set().union(*R); i.data = R[0]; i.wide = mn.endswith(("x3","x4"))
            if mn.startswith("buffer_atomic") and "sc0" in mods: i.w = R[0]
        else: raise SystemExit("hz: " + line)
    elif mn.startswith("s_"):
        i.k = "salu"
        if R and not mn.startswith(("s_cmp","s_waitcnt","s_cbranch","s_branch","s_barrier","s_sleep","s_setprio","s_bitcmp")): i.w = R[0]; i.r = set().union(*R[1:]) if len(R) > 1 else set()
    return i
def isv(x): return x[0] in "va"
def need(p, c):
    n = 0
    if p.k == "valu":
        wv = {x for x in p.w if isv(x)}; ws = p.w - wv
        if c.k == "mfma" and wv & c.r: n = max(n, 2)
        if c.k == "valu":
            if wv & c.r:
                if c.dpp or c.perm: n = max(n, 2)
                if c.rdl or p.opsel: n = max(n, 1)
                if p.trans and not c.trans: n = max(n, 1)
            if ws & c.r: n = max(n, 4 if c.rdl else 2)
        if c.k == "vmem" and ws & c.r: n = max(n, 5)
    if p.k == "mfma":
        big = 12 if p.passes == 8 else 8
        if c.k == "mfma":
            if p.w & c.ab: n = max(n, big)
            if p.w & c.c and not (p.w == c.c and p.passes == c.passes): n = max(n, big - 2)
            if p.w & c.w and not (p.w & c.c): n = max(n, big - 2)
        elif c.k in ("valu","ds","vmem"):
            if p.w & (c.r | c.w): n = max(n, big)
            if c.k == "valu" and p.c & c.w: n = max(n, 7 if p.passes == 8 else 3)
    if p.k == "vmem" and p.wide and p.data & c.w: n = max(n, 2)
    if p.k == "salu" and ("s","m0") in p.w and c.k == "vmem" and c.lds: n = max(n, 1)
    return n
def fix(lines, report=None):
    out = []; hist = []; added = 0
    for l in lines:
        i = parse(l)
        if i is None: out.append(l); continue
        gap = 0; pad = 0
        for p in reversed(hist):
            pad = max(pad, need(p, i) - gap)
            gap += p.states
            if gap >= 12: break
        if pad > 0:
            out.append(f"    s_nop {pad-1}"); n = parse(out[-1]); hist.append(n); added += pad
            if report is not None: report.append((len(out), pad, l.strip()))
        out.append(l); hist.append(i); hist = hist[-14:]
    return out, added
```

```python
from common import *
def role_ln(a, sSeg):
    srd(a, 8, 0, 2621440); srd(a, 12, 64, 1280)
    a(f"""v_lshrrev_b32 v4, 3, v0
    v_and_b32 v5, 7, v0
    v_lshlrev_b32 v3, 4, v5
    v_mul_u32_u24 v1, 1280, v4
    v_add_u32 v1, v1, v3
    s_lshl_b32 s26, s{sSeg}, 2
    s_add_u32 s26, s26, s{sW}
    s_mul_i32 s27, s26, 10240
    v_lshrrev_b32 v6, 1, v5
    v_lshlrev_b32 v6, 10, v6
    v_and_b32 v7, 1, v5
    v_lshlrev_b32 v7, 9, v7
    v_lshlrev_b32 v2, 4, v4
    v_add3_u32 v2, v2, v6, v7
    s_mul_i32 s28, s{sSeg}, 40960
    s_lshl_b32 s29, s{sW}, 7
    s_add_u32 s28, s28, s29
    s_add_u32 s28, s28, {XN}
    s_waitcnt lgkmcnt(0)""")
    P=8; X=48; WR=128
    for i in range(10): a(f"buffer_load_dwordx4 v[{P+4*i}:{P+4*i+3}], v1, {SA_}, s27 offen offset:{128*i}")
    for i in range(10): a(f"buffer_load_dwordx4 v[{140+4*i}:{143+4*i}], v3, {SB_}, 0 offen offset:{128*i}")
    for i in range(10):
        a(f"s_waitcnt vmcnt({19-i})")
        for q in range(4): bf_unpack(a, X+8*i+2*q, X+8*i+2*q+1, P+4*i+q)
    a(f"v_pk_add_f32 v[4:5], v[{X}:{X+1}], v[{X+2}:{X+3}]\n v_pk_add_f32 v[6:7], v[{X+4}:{X+5}], v[{X+6}:{X+7}]")
    for k in range(8, 80, 4):
        a(f"v_pk_add_f32 v[4:5], v[4:5], v[{X+k}:{X+k+1}]\n v_pk_add_f32 v[6:7], v[6:7], v[{X+k+2}:{X+k+3}]")
    a("v_pk_add_f32 v[4:5], v[4:5], v[6:7]\n v_add_f32 v4, v4, v5")
    red8(a, 4, 5)
    a(f"v_mul_f32 v4, {f2u(1/640)}, v4\n v_mov_b32 v5, v4\n v_mov_b32 v6, 0\n v_mov_b32 v7, 0\n v_mov_b32 v130, 0\n v_mov_b32 v131, 0")
    for k in range(0, 80, 4):
        a(f"""v_pk_add_f32 v[132:133], v[{X+k}:{X+k+1}], v[4:5] neg_lo:[0,1] neg_hi:[0,1]
        v_pk_add_f32 v[134:135], v[{X+k+2}:{X+k+3}], v[4:5] neg_lo:[0,1] neg_hi:[0,1]
        v_pk_fma_f32 v[6:7], v[132:133], v[132:133], v[6:7]
        v_pk_fma_f32 v[130:131], v[134:135], v[134:135], v[130:131]""")
    a("v_pk_add_f32 v[6:7], v[6:7], v[130:131]\n v_add_f32 v6, v6, v7")
    red8(a, 6, 7)
    a(f"""v_mul_f32 v6, {f2u(1/640)}, v6
    v_cvt_pk_bf16_f32 v4, v4, v6
    v_and_b32 v6, 0xffff0000, v4
    v_lshlrev_b32 v4, 16, v4
    v_add_f32 v6, {f2u(1e-5)}, v6
    v_cvt_pk_bf16_f32 v6, v6, v6
    v_and_b32 v6, 0xffff0000, v6
    v_sqrt_f32 v6, v6
    v_mov_b32 v5, v4
    v_cvt_pk_bf16_f32 v6, v6, v6
    v_and_b32 v6, 0xffff0000, v6
    v_rcp_f32 v6, v6
    s_nop 0
    v_mov_b32 v7, v6""")
    for i in range(10):
        for q in range(4):
            x = X+8*i+2*q; p = P+4*i+q
            a(f"""v_pk_add_f32 v[{x}:{x+1}], v[{x}:{x+1}], v[4:5] neg_lo:[0,1] neg_hi:[0,1]
            v_cvt_pk_bf16_f32 v{p}, v{x}, v{x+1}""")
            bf_unpack(a, x, x+1, p)
            a(f"v_pk_mul_f32 v[{x}:{x+1}], v[{x}:{x+1}], v[6:7]\n v_cvt_pk_bf16_f32 v{p}, v{x}, v{x+1}")
        a(f"buffer_store_dwordx4 v[{P+4*i}:{P+4*i+3}], v2, {WS}, s28 offen sc1")
        if i < 9: a("s_add_u32 s28, s28, 4096")
    a(f"""s_lshl_b32 s29, s{sSeg}, 7
    s_lshl_b32 s30, s{sW}, 2
    s_add_u32 s29, s29, s30
    s_add_u32 s29, s29, {F_LN}""")
    return P, X
def role_ln2(a, P, X):
    a(f"v_mov_b32 v4, 0\n v_mov_b32 v5, 0\n s_add_u32 s31, s27, {GA}")
    for i in range(10):
        for q in range(4): bf_unpack(a, X+2*q, X+2*q+1, P+4*i+q)
        for q in range(4):
            bf_unpack(a, 136, 137, 140+4*i+q)
            a(f"v_pk_fma_f32 v[4:5], v[{X+2*q}:{X+2*q+1}], v[136:137], v[4:5]")
        for e in range(8): silu(a, X+e, X+e, X+8+e)
        for q in range(4): a(f"v_cvt_pk_bf16_f32 v{X+16+q}, v{X+2*q}, v{X+2*q+1}")
        a(f"buffer_store_dwordx4 v[{X+16}:{X+19}], v1, {WS}, s31 offen offset:{128*i} sc1")
    a("v_add_f32 v4, v4, v5")
    red8(a, 4, 5)
    a(f"""v_cvt_pk_bf16_f32 v4, v4, v4
    v_and_b32 v4, 0xffff0000, v4
    v_lshrrev_b32 v5, 3, v0
    v_lshlrev_b32 v5, 2, v5
    s_lshl_b32 s30, s26, 5
    s_add_u32 s30, s30, {RA}
    buffer_store_dword v4, v5, {WS}, s30 offen sc1""")
def flag_store(a, sOff, val, t=4):
    a(f"v_mov_b32 v{t}, {val}\n v_mov_b32 v{t+1}, 0\n buffer_store_dword v{t}, v{t+1}, {WS}, s{sOff} offen sc1")
```

```python
import sys
from common import *
import hz
from r_ln import *; from r_gemm import *; from r_mlp import *; from r_attn import *; import r_chain as rc
NAME = "recurrent_scan__memory_aug_recurrent_mem_tr__moe_arch_mod__prompt"
def ticket(a):
    L = a.label; done = L("tk"); w = L("tw"); got = L("tg"); n31 = L("t31"); wk = L("twk"); gen = L("tgn"); pub = L("tp")
    a(f"""s_cmp_lg_u32 s{sW}, 0
    s_cbranch_scc1 {done}
    s_mov_b64 exec, 1
    s_getreg_b32 s26, hwreg(HW_REG_XCC_ID)
    s_and_b32 s26, s26, 7
    s_lshl_b32 s27, s26, 2
    v_mov_b32 v1, 0
    v_mov_b32 v2, 1
    buffer_atomic_add v2, v1, {DBG}, s27 offen sc0 sc1
    s_lshr_b32 s29, s26, 1
    s_waitcnt vmcnt(0)
    v_readfirstlane_b32 s30, v2
    s_cmp_lg_u32 s30, 31
    s_cbranch_scc1 {n31}
    s_lshl_b32 s27, s29, 2
    v_mov_b32 v2, 1
    buffer_atomic_add v2, v1, {DBG}, s27 offen offset:32 sc0 sc1
    s_waitcnt vmcnt(0)
    v_readfirstlane_b32 s27, v2
    s_cmp_lg_u32 s27, 1
    s_cbranch_scc1 {n31}
    s_add_u32 s27, s29, 1
    v_mov_b32 v2, s27
    v_mov_b32 v3, 0
    buffer_atomic_cmpswap v[2:3], v1, {DBG}, 0 offen offset:48 sc1
    {n31}:
    s_mov_b32 s31, 0
    {w}:
    buffer_load_dword v2, v1, {DBG}, 0 offen offset:48 sc1
    s_waitcnt vmcnt(0)
    v_readfirstlane_b32 s27, v2
    s_cmp_lg_u32 s27, 0
    s_cbranch_scc1 {got}
    s_add_u32 s31, s31, 1
    s_cmp_lt_u32 s31, 2000
    s_cbranch_scc1 {w}
    v_mov_b32 v2, 0x80
    v_mov_b32 v3, 0
    buffer_atomic_cmpswap v[2:3], v1, {DBG}, 0 offen offset:48 sc1
    s_branch {n31}
    {got}:
    s_cmp_eq_u32 s27, 0x80
    s_cbranch_scc1 {gen}
    s_add_u32 s29, s29, 1
    s_cmp_lg_u32 s27, s29
    s_cbranch_scc1 {wk}
    s_cmp_ge_u32 s30, 32
    s_cbranch_scc1 {wk}
    s_and_b32 s26, s26, 1
    s_lshl_b32 s26, s26, 5
    s_add_u32 s26, s26, s30
    s_add_u32 s26, s26, 0x100
    s_branch {pub}
    {gen}:
    v_mov_b32 v2, 1
    buffer_atomic_add v2, v1, {DBG}, 0 offen offset:72 sc0 sc1
    s_waitcnt vmcnt(0)
    v_readfirstlane_b32 s26, v2
    s_cmp_ge_u32 s26, 64
    s_cbranch_scc1 {wk}
    s_add_u32 s26, s26, 0x200
    s_branch {pub}
    {wk}:
    v_mov_b32 v2, 1
    buffer_atomic_add v2, v1, {DBG}, 0 offen offset:52 sc0 sc1
    s_waitcnt vmcnt(0)
    v_readfirstlane_b32 s26, v2
    {pub}:
    v_mov_b32 v2, s26
    ds_write_b32 v1, v2
    s_waitcnt lgkmcnt(0)
    s_mov_b64 exec, -1
    {done}:
    s_barrier
    v_mov_b32 v1, 0
    ds_read_b32 v2, v1
    s_waitcnt lgkmcnt(0)
    v_readfirstlane_b32 s26, v2
    s_barrier
    s_lshr_b32 s28, s26, 8
    s_and_b32 s{sJ}, s26, 0xff
    s_bfe_u32 s32, s26, 0x10005
    s_and_b32 s33, s26, 31""")
def chain(a, merged, cfg):
    a("s_mov_b32 s76, s28")
    rc.chain_prologue(a, merged)
    g = a.label("gen")
    a(f"s_cmp_eq_u32 s76, 2\n s_cbranch_scc1 {g}")
    for gen in (False, True):
        if gen: a(f"{g}:")
        rc.chain_clear(a, gen, merged); rc.chain_ready(a); rc.chain_loop(a, gen, cfg)
        a(f"s_branch L_exit_{a.kn}")
def count(a, off):
    a(f"v_mov_b32 v4, 0\n v_mov_b32 v5, 1\n s_mov_b64 exec, 1\n buffer_atomic_add v5, v4, {DBG}, 0 offen offset:{off} sc1\n s_mov_b64 exec, -1")
def kern(name, grid, lds, body):
    a = Asm(); a.kn = name; prologue(a, grid); body(a); a(f"L_exit_{name}:\n s_endpgm")
    lines, n = hz.fix(a.lines)
    return (f"; @launch kernel={name} grid=({grid},1,1) block=(256,1,1) lds={lds}\n", kernel_begin(name) + "\n".join(lines) + "\n" + kernel_desc(name, 512, 256))
def multi(cfg):
    ks = []
    def clear(a):
        a(f"""s_lshl_b32 s26, s2, 14
        s_lshl_b32 s27, s{sW}, 12
        s_add_u32 s26, s26, s27
        s_add_u32 s27, s26, {FL}
        s_add_u32 s26, s26, {AGR}
        v_lshlrev_b32 v1, 4, v0
        v_mov_b64 v[4:5], -1
        v_mov_b64 v[6:7], -1
        v_mov_b64 v[8:9], 0
        v_mov_b64 v[10:11], 0""")
        for j in range(4): a(f"buffer_store_dwordx4 v[4:7], v1, {WS}, s26 offen offset:{j*1024}")
        a(f"s_cmp_ge_u32 s2, 3\n s_cbranch_scc1 L_exit_{a.kn}")
        for j in range(4): a(f"buffer_store_dwordx4 v[8:11], v1, {WS}, s27 offen offset:{j*1024}")
    ks.append(kern("clr_kernel", 40, 0, clear))
    def ln(a):
        P, X = role_ln(a, 2); role_ln2(a, P, X); a("s_waitcnt vmcnt(0)"); flag_store(a, 29, "2")
    ks.append(kern("ln_kernel", 64, 0, ln))
    def gm(a):
        a(f"s_mov_b32 s{sJ}, s2"); gemm_ids(a); gemm_wload(a); gemm_wread(a); wait_ln(a, 1); gemm_main(a)
    ks.append(kern("gemm_kernel", 192, 163840, gm))
    def m1(a):
        topk(a); d = role_mlp1(a, 2); a(f"{d}:")
    ks.append(kern("m1_kernel", 108, 16384, m1))
    def m2(a):
        topk(a); d = role_mlp2(a, 2); a(f"{d}:")
    ks.append(kern("m2_kernel", 40, 16384, m2))
    def ch(a):
        ticket(a); a(f"s_cmp_eq_u32 s28, 0\n s_cbranch_scc1 L_exit_{a.kn}"); chain(a, False, cfg)
    ks.append(kern("chain_kernel", 256, 163840, ch))
    ks.append(kern("attn_kernel", 32, 0, lambda a: role_attn(a, 2, False)))
    ks.append(kern("wo_kernel", 160, 163840, lambda a: role_wo(a, 2, False)))
    n = cfg.get("nk", len(ks)); ks = ks[:n]
    return "".join(k[0] for k in ks) + HEADER + "".join(k[1] for k in ks)
if __name__ == "__main__":
    cfg = eval(sys.argv[2]) if len(sys.argv) > 2 else {}
    open(sys.argv[1], "w").write(multi(cfg))
```

```python
import sys
from common import *
import hz
from r_ln import *; from r_gemm import *; from r_mlp import *; from r_attn import *; import r_chain as rc
NAME = "recurrent_scan__memory_aug_recurrent_mem_tr__moe_arch_mod__prompt"
def ticket(a):
    L = a.label; done = L("tk"); w = L("tw"); got = L("tg"); n31 = L("t31"); wk = L("twk"); gen = L("tgn"); pub = L("tp")
    a(f"""s_cmp_lg_u32 s{sW}, 0
    s_cbranch_scc1 {done}
    s_mov_b64 exec, 1
    s_getreg_b32 s26, hwreg(HW_REG_XCC_ID)
    s_and_b32 s26, s26, 7
    s_lshl_b32 s27, s26, 2
    v_mov_b32 v1, 0
    v_mov_b32 v2, 1
    buffer_atomic_add v2, v1, {DBG}, s27 offen sc0 sc1
    s_lshr_b32 s29, s26, 1
    s_waitcnt vmcnt(0)
    v_readfirstlane_b32 s30, v2
    s_cmp_lg_u32 s30, 31
    s_cbranch_scc1 {n31}
    s_lshl_b32 s27, s29, 2
    v_mov_b32 v2, 1
    buffer_atomic_add v2, v1, {DBG}, s27 offen offset:32 sc0 sc1
    s_waitcnt vmcnt(0)
    v_readfirstlane_b32 s27, v2
    s_cmp_lg_u32 s27, 1
    s_cbranch_scc1 {n31}
    s_add_u32 s27, s29, 1
    v_mov_b32 v2, s27
    v_mov_b32 v3, 0
    buffer_atomic_cmpswap v[2:3], v1, {DBG}, 0 offen offset:48 sc1
    {n31}:
    s_mov_b32 s31, 0
    {w}:
    buffer_load_dword v2, v1, {DBG}, 0 offen offset:48 sc1
    s_waitcnt vmcnt(0)
    v_readfirstlane_b32 s27, v2
    s_cmp_lg_u32 s27, 0
    s_cbranch_scc1 {got}
    s_add_u32 s31, s31, 1
    s_cmp_lt_u32 s31, 2000
    s_cbranch_scc1 {w}
    v_mov_b32 v2, 0x80
    v_mov_b32 v3, 0
    buffer_atomic_cmpswap v[2:3], v1, {DBG}, 0 offen offset:48 sc1
    s_branch {n31}
    {got}:
    s_cmp_eq_u32 s27, 0x80
    s_cbranch_scc1 {gen}
    s_add_u32 s29, s29, 1
    s_cmp_lg_u32 s27, s29
    s_cbranch_scc1 {wk}
    s_cmp_ge_u32 s30, 32
    s_cbranch_scc1 {wk}
    s_and_b32 s26, s26, 1
    s_lshl_b32 s26, s26, 5
    s_add_u32 s26, s26, s30
    s_add_u32 s26, s26, 0x100
    s_branch {pub}
    {gen}:
    v_mov_b32 v2, 1
    buffer_atomic_add v2, v1, {DBG}, 0 offen offset:72 sc0 sc1
    s_waitcnt vmcnt(0)
    v_readfirstlane_b32 s26, v2
    s_cmp_ge_u32 s26, 64
    s_cbranch_scc1 {wk}
    s_add_u32 s26, s26, 0x200
    s_branch {pub}
    {wk}:
    v_mov_b32 v2, 1
    buffer_atomic_add v2, v1, {DBG}, 0 offen offset:52 sc0 sc1
    s_waitcnt vmcnt(0)
    v_readfirstlane_b32 s26, v2
    {pub}:
    v_mov_b32 v2, s26
    ds_write_b32 v1, v2
    s_waitcnt lgkmcnt(0)
    s_mov_b64 exec, -1
    {done}:
    s_barrier
    v_mov_b32 v1, 0
    ds_read_b32 v2, v1
    s_waitcnt lgkmcnt(0)
    v_readfirstlane_b32 s26, v2
    s_barrier
    s_lshr_b32 s28, s26, 8
    s_and_b32 s{sJ}, s26, 0xff
    s_bfe_u32 s32, s26, 0x10005
    s_and_b32 s33, s26, 31""")
def chain(a, merged, cfg):
    a("s_mov_b32 s76, s28")
    rc.chain_prologue(a, merged)
    g = a.label("gen")
    a(f"s_cmp_eq_u32 s76, 2\n s_cbranch_scc1 {g}")
    for gen in (False, True):
        if gen: a(f"{g}:")
        stamp(a, 2); rc.chain_clear(a, gen, merged); rc.chain_ready(a, merged); stamp(a, 3); rc.chain_loop(a, gen, cfg)
        a(f"s_branch L_exit_{a.kn}")
def count(a, off):
    a(f"v_mov_b32 v4, 0\n v_mov_b32 v5, 1\n s_mov_b64 exec, 1\n buffer_atomic_add v5, v4, {DBG}, 0 offen offset:{off} sc1\n s_mov_b64 exec, -1")
def kern(name, grid, lds, body):
    a = Asm(); a.kn = name; prologue(a, grid); body(a); a(f"L_exit_{name}:\n s_endpgm")
    lines, n = hz.fix(a.lines)
    return (f"; @launch kernel={name} grid=({grid},1,1) block=(256,1,1) lds={lds}\n", kernel_begin(name) + "\n".join(lines) + "\n" + kernel_desc(name, 512, 256))
def multi(cfg):
    ks = []
    def clear(a):
        a(f"""s_lshl_b32 s26, s2, 14
        s_lshl_b32 s27, s{sW}, 12
        s_add_u32 s26, s26, s27
        s_add_u32 s27, s26, {FL}
        s_add_u32 s26, s26, {AGR}
        v_lshlrev_b32 v1, 4, v0
        v_mov_b64 v[4:5], -1
        v_mov_b64 v[6:7], -1
        v_mov_b64 v[8:9], 0
        v_mov_b64 v[10:11], 0""")
        for j in range(4): a(f"buffer_store_dwordx4 v[4:7], v1, {WS}, s26 offen offset:{j*1024}")
        a(f"s_cmp_ge_u32 s2, 3\n s_cbranch_scc1 L_exit_{a.kn}")
        for j in range(4): a(f"buffer_store_dwordx4 v[8:11], v1, {WS}, s27 offen offset:{j*1024}")
    ks.append(kern("clr_kernel", 40, 0, clear))
    def ln(a):
        P, X = role_ln(a, 2); role_ln2(a, P, X); a("s_waitcnt vmcnt(0)"); flag_store(a, 29, "2")
    ks.append(kern("ln_kernel", 64, 0, ln))
    def gm(a):
        a(f"s_mov_b32 s{sJ}, s2"); gemm_ids(a); gemm_wload(a); gemm_wread(a); wait_ln(a, 1); gemm_main(a)
    ks.append(kern("gemm_kernel", 192, 163840, gm))
    def m1(a):
        topk(a); d = role_mlp1(a, 2); a(f"{d}:")
    ks.append(kern("m1_kernel", 108, 16384, m1))
    def m2(a):
        topk(a); d = role_mlp2(a, 2); a(f"{d}:")
    ks.append(kern("m2_kernel", 40, 16384, m2))
    def ch(a):
        ticket(a); a(f"s_cmp_eq_u32 s28, 0\n s_cbranch_scc1 L_exit_{a.kn}"); chain(a, False, cfg)
    ks.append(kern("chain_kernel", 256, 163840, ch))
    ks.append(kern("attn_kernel", 32, 0, lambda a: role_attn(a, 2, False)))
    ks.append(kern("wo_kernel", 160, 163840, lambda a: role_wo(a, 2, False)))
    n = cfg.get("nk", len(ks)); ks = ks[:n]
    return "".join(k[0] for k in ks) + HEADER + "".join(k[1] for k in ks)
def wait_cnt(a, off, val, nm):
    a("v_mov_b32 v5, 0")
    spin(a, f"buffer_load_dword v6, v5, {DBG}, 0 offen offset:{off} sc1", f"v_cmp_gt_u32 vcc, {val}, v6", 27, nm)
def merged(cfg):
    a = Asm(); a.kn = NAME + "_kernel"; a.stamp_on = cfg.get("stamp")
    prologue(a, 256); stamp(a, 0)
    nc = a.label("ncl")
    a(f"""s_cmp_lg_u32 s{sW}, 0
    s_cbranch_scc1 {nc}
    s_lshl_b32 s26, s2, 8
    s_min_u32 s26, s26, {(NFL-2)*128}
    s_add_u32 s26, s26, {FL}
    v_lshlrev_b32 v1, 2, v0
    v_mov_b32 v2, 0
    buffer_store_dword v2, v1, {WS}, s26 offen sc1
    s_waitcnt vmcnt(0)""")
    count(a, 56); a(f"{nc}:")
    ticket(a); stamp(a, 1)
    wk = a.label("wk")
    a(f"s_cmp_eq_u32 s28, 0\n s_cbranch_scc1 {wk}")
    a(f"s_lshl_b32 s3, s32, 5\n s_add_u32 s3, s3, s33")
    chain(a, True, cfg)
    a(f"{wk}:\n s_cmp_ge_u32 s{sJ}, 192\n s_cbranch_scc1 L_exit_{a.kn}\n s_add_u32 s3, s{sJ}, 64")
    gemm_ids(a)
    nl = a.label("nl")
    a(f"s_cmp_lg_u32 s32, 2\n s_cbranch_scc1 {nl}\n s_lshl_b32 s35, s34, 5\n s_add_u32 s35, s35, s33")
    P, X = role_ln(a, 35)
    a("s_mov_b32 s36, s27"); wait_cnt(a, 56, hex(256), "wi0"); a("s_mov_b32 s27, s36")
    flag_store(a, 29, "1"); stamp(a, 2)
    role_ln2(a, P, X); a("s_waitcnt vmcnt(0)"); flag_store(a, 29, "2")
    a(f"{nl}:")
    gemm_wload(a); gemm_wread(a); stamp(a, 3); wait_cnt(a, 56, hex(256), "wi1"); wait_ln(a, 1); stamp(a, 4); gemm_main(a); stamp(a, 5)
    at = a.label("at"); wo = a.label("wo"); m2 = a.label("m2")
    a(f"s_cmp_ge_u32 s{sJ}, 160\n s_cbranch_scc1 {at}\n s_cmp_ge_u32 s{sJ}, 148\n s_cbranch_scc1 {wo}")
    wait_ln(a, 2); topk(a)
    a(f"s_cmp_ge_u32 s{sJ}, 108\n s_cbranch_scc1 {m2}")
    d = role_mlp1(a, sJ); count(a, 64); a(f"{d}:\n s_branch {wo}\n {m2}:\n s_sub_u32 s35, s{sJ}, 108")
    wait_cnt(a, 64, hex(108), "wm1")
    d = role_mlp2(a, 35); count(a, 68); a(f"{d}:\n {wo}:"); stamp(a, 6)
    role_wo(a, sJ, True)
    a(f"s_branch L_exit_{a.kn}\n {at}:\n s_sub_u32 s42, s{sJ}, 160")
    role_attn(a, 42, True)
    a(f"L_exit_{a.kn}:")
    if a.stamp_on:
        nx = a.label("nst")
        a(f"s_cmp_ge_u32 s2, 256\n s_cbranch_scc1 {nx}"); stamp(a, 10)
        a(f"s_lshl_b32 s26, s3, 2\n s_add_u32 s26, s26, s{sW}\n s_lshl_b32 s26, s26, 6\n s_add_u32 s26, s26, 0x7100000\n v_mov_b32 v1, 0")
        for i in range(11): a(f"v_mov_b32 v2, s{78+2*i}\n buffer_store_dword v2, v1, {WS}, s26 offen offset:{4*i}")
        a(f"{nx}:")
    a("s_endpgm")
    lines, n = hz.fix(a.lines)
    return "; @launch grid=(256,1,1) block=(256,1,1) lds=163840\n" + HEADER + kernel_begin(a.kn) + "\n".join(lines) + "\n" + kernel_desc(a.kn, 512, 256)
if __name__ == "__main__":
    cfg = eval(sys.argv[2]) if len(sys.argv) > 2 else {}
    open(sys.argv[1], "w").write(multi(cfg) if cfg.get("multi") else merged(cfg))
```

```python
from asmlib import *
XN=0x0; GA=0x280000; RA=0x500000; HM=0x510000; FL=0x520000
RSB=0x600000; AGL=0x700000; AGR=0x800000; RSS=0x40000
QX=0x1000000; KX=0x2000000; VX=0x3000000; OA=0x4000000; XM=0x5000000; VM=0x5800000
F_LN=FL; F_G=FL+64*128; F_PUB=FL+256*128; F_O=FL+320*128; NFL=352
WS="s[4:7]"; SA_="s[8:11]"; SB_="s[12:15]"; SC_="s[16:19]"; DBG="s[20:23]"
sW=24; sJ=25
SPIN=400000
LOG2E=1.4426950408889634
import struct
def f2u(x): return "0x%08x" % struct.unpack("<I", struct.pack("<f", x))[0]
def srd(a, d, koff, nbytes):
    a(f"s_load_dwordx2 s[{d}:{d+1}], s[0:1], {koff}\n s_mov_b32 s{d+2}, {hex(nbytes)}\n s_mov_b32 s{d+3}, 0x00020000")
def prologue(a, ngrid):
    a(f"s_cmp_ge_u32 s2, {ngrid}\n s_cbranch_scc1 L_exit_{a.kn}")
    srd(a, 4, 112, 0x10000000); srd(a, 20, 104, 256)
    a(f"v_lshrrev_b32 v1, 6, v0\n v_and_b32 v0, 63, v0\n v_readfirstlane_b32 s{sW}, v1\n s_waitcnt lgkmcnt(0)")
def spin(a, loads, check, cnt, name):
    l = a.label(name); ok = a.label(name + "ok")
    a(f"s_mov_b32 s{cnt}, 0\n {l}:")
    a(loads); a("s_waitcnt vmcnt(0)"); a(check)
    a(f"""s_cbranch_vccz {ok}
    s_add_u32 s{cnt}, s{cnt}, 1
    s_cmp_lt_u32 s{cnt}, {SPIN}
    s_cbranch_scc0 L_exit_{a.kn}
    s_sleep 2
    s_branch {l}
    {ok}:""")
def bf_unpack(a, lo, hi, src):
    a(f"v_lshlrev_b32 v{lo}, 16, v{src}\n v_and_b32 v{hi}, 0xffff0000, v{src}")
def red8(a, v, t, op="v_add_f32"):
    a(f"""{op}_dpp v{v}, v{v}, v{v} quad_perm:[1,0,3,2] row_mask:0xf bank_mask:0xf
    {op}_dpp v{v}, v{v}, v{v} quad_perm:[2,3,0,1] row_mask:0xf bank_mask:0xf
    {op}_dpp v{v}, v{v}, v{v} row_half_mirror row_mask:0xf bank_mask:0xf""")
def silu(a, dst, x, t):
    a(f"""v_mul_f32 v{t}, {f2u(-LOG2E)}, v{x}
    v_exp_f32 v{t}, v{t}
    v_add_f32 v{t}, 1.0, v{t}
    v_rcp_f32 v{t}, v{t}
    v_mul_f32 v{dst}, v{x}, v{t}""")

def stamp(a, i):
    if getattr(a, "stamp_on", None): a(f"s_memrealtime s[{78+2*i}:{79+2*i}]\n s_waitcnt lgkmcnt(0)")

D_GT=128; D_M1=132; D_M2=136; D_RDY=140; D_WL=148
FORCEGEN = False
def arrive(a, t=4):
    n = a.label("na")
    a(f"""s_bitcmp1_b32 s77, 0
    s_cbranch_scc1 {n}
    s_or_b32 s77, s77, 1
    s_cmp_lg_u32 s{sW}, 0
    s_cbranch_scc1 {n}
    s_lshr_b32 s26, s2, 3
    s_lshl_b32 s26, 1, s26
    s_lshl_b32 s27, s73, 3
    v_mov_b32 v{t}, s26
    v_mov_b32 v{t+1}, 0x100
    v_mov_b32 v{t+2}, 0
    s_mov_b64 exec, 1
    buffer_atomic_add_x2 v[{t}:{t+1}], v{t+2}, {DBG}, s27 offen sc1
    s_mov_b64 exec, -1
    {n}:""")
def ver_addr(a, t, lane="v0", sh=2):
    a(f"v_lshlrev_b32 v{t}, {sh}, {lane}\n v_and_b32 v{t}, 60, v{t}" if sh >= 0 else f"v_lshrrev_b32 v{t}, {-sh}, {lane}\n v_and_b32 v{t}, 60, v{t}")
def verify(a, t, lane="v0", sh=2):
    l = a.label("vf"); ok = a.label("vok"); fu = a.label("vfu"); tr = a.label("vtr")
    a(f"s_bitcmp1_b32 s77, 1\n s_cbranch_scc1 {tr}"); ver_addr(a, t, lane, sh)
    a(f"""s_mov_b32 s72, 0
    {l}:
    buffer_load_dword v{t+1}, v{t}, {DBG}, 0 offen sc1
    s_waitcnt vmcnt(0)
    v_lshrrev_b32 v{t+2}, 8, v{t+1}
    v_add_u32_dpp v{t+2}, v{t+2}, v{t+2} quad_perm:[2,3,0,1] row_mask:0xf bank_mask:0xf
    v_add_u32_dpp v{t+2}, v{t+2}, v{t+2} row_ror:4 row_mask:0xf bank_mask:0xf
    v_add_u32_dpp v{t+2}, v{t+2}, v{t+2} row_ror:8 row_mask:0xf bank_mask:0xf
    v_readlane_b32 s70, v{t+2}, 1
    s_cmp_ge_u32 s70, 0x100
    s_cbranch_scc1 {fu}
    s_add_u32 s72, s72, 1
    s_cmp_lt_u32 s72, {SPIN}
    s_cbranch_scc1 {l}
    s_branch L_exit_{a.kn}
    {fu}:
    s_cmp_gt_u32 s70, 0x100
    s_cbranch_scc1 L_exit_{a.kn}
    v_mov_b32 v{t+2}, {'0x2000' if not FORCEGEN else '0x2001'}
    v_bfe_u32 v{t}, v{t}, 2, 1
    v_cmp_eq_u32 vcc, 1, v{t}
    v_cndmask_b32 v{t+2}, -1, v{t+2}, vcc
    v_cmp_ne_u32 vcc, v{t+1}, v{t+2}
    s_cbranch_vccnz L_gen_{a.kn}
    s_or_b32 s77, s77, 2
    {tr}:
    s_waitcnt vmcnt(0)""")
```

```python
import re
TRANS = ("v_exp_f32","v_log_f32","v_rcp_f32","v_rsq_f32","v_sqrt_f32","v_sin_f32","v_cos_f32","v_rcp_iflag_f32")
def regs(op):
    op = op.strip()
    if op.startswith("-"): op = op[1:]
    if op.startswith("|"): op = op.strip("|")
    m = re.fullmatch(r"([vas])(\d+)", op)
    if m: return {(m.group(1), int(m.group(2)))}
    m = re.fullmatch(r"([vas])\[(\d+):(\d+)\]", op)
    if m: return {(m.group(1), i) for i in range(int(m.group(2)), int(m.group(3))+1)}
    if op == "vcc": return {("s","vcc")}
    if op in ("vcc_lo","vcc_hi"): return {("s","vcc")}
    if op == "m0": return {("s","m0")}
    if op in ("exec","exec_lo","exec_hi"): return {("s","exec")}
    return set()
class I: pass
def parse(line):
    t = line.split(";")[0].strip()
    if not t or t.endswith(":") or t.startswith("."): return None
    p = t.split(None, 1); mn = p[0]; rest = p[1] if len(p) > 1 else ""
    rest = re.sub(r"(op_sel|op_sel_hi|neg_lo|neg_hi|quad_perm):\[([0-9,]*)\]", lambda m: m.group(1) + ":[" + m.group(2).replace(",", "_") + "]", rest)
    ops = [o.strip() for o in rest.split(",")] if rest else []
    mods = ""
    if ops:
        q = ops[-1].split(None, 1)
        ops[-1] = q[0]; mods = q[1] if len(q) > 1 else ""
    i = I(); i.mn = mn; i.ops = ops; i.mods = mods; i.w = set(); i.r = set(); i.k = "other"; i.states = 1
    R = [regs(o) for o in ops]
    if mn == "s_nop": i.states = int(ops[0]) + 1; i.k = "nop"
    elif mn.startswith("v_mfma") or mn.startswith("v_smfmac"):
        i.k = "mfma"; i.w = R[0]; i.passes = 8 if "32x32" in mn else 4
        if mn.startswith("v_smfmac"): i.ab = R[1] | R[2] | R[3]; i.c = R[0]
        else: i.ab = R[1] | R[2]; i.c = R[3]
        i.r = i.ab | i.c
    elif mn.startswith("v_"):
        i.k = "valu"; i.trans = mn.replace("_e32","").replace("_e64","") in TRANS
        i.dpp = ("dpp" in mn) or ("quad_perm" in mods) or ("row_" in mods)
        i.perm = mn.startswith("v_permlane"); i.rdl = mn.startswith("v_readlane") or mn.startswith("v_readfirstlane")
        i.opsel = ("op_sel" in mods and not mn.startswith("v_pk_")) or "sdwa" in mn
        i.w = set(R[0]); i.r = set().union(*R[1:]) if len(R) > 1 else set()
        if mn.startswith("v_permlane") and "swap" in mn: i.w |= R[1]; i.r |= R[0]
        if "_co_" in mn: i.w |= R[1]
        if mn.startswith(("v_fmac","v_mac","v_dot2c","v_writelane")) or i.dpp or "d16" in mn or i.opsel: i.r |= R[0]
    elif mn.startswith("ds_"):
        i.k = "ds"
        if mn.startswith(("ds_read","ds_bpermute","ds_permute","ds_swizzle")): i.w = R[0]; i.r = set().union(*R[1:])
        else: i.r = set().union(*R)
    elif mn.startswith(("buffer_","global_")):
        i.k = "vmem"; i.lds = " lds" in (" " + mods); i.wide = False
        if mn.startswith("buffer_load"):
            if i.lds: i.r = set().union(*R)
            else: i.w = R[0]; i.r = set().union(*R[1:])
        elif mn.startswith("buffer_store") or mn.startswith("buffer_atomic"):
            i.r = set().union(*R); i.data = R[0]; i.wide = mn.endswith(("x3","x4"))
            if mn.startswith("buffer_atomic") and "sc0" in mods: i.w = R[0]
        else: raise SystemExit("hz: " + line)
    elif mn.startswith("s_"):
        i.k = "salu"
        if R and not mn.startswith(("s_cmp","s_waitcnt","s_cbranch","s_branch","s_barrier","s_sleep","s_setprio","s_bitcmp")): i.w = R[0]; i.r = set().union(*R[1:]) if len(R) > 1 else set()
    return i
def isv(x): return x[0] in "va"
def need(p, c):
    n = 0
    if p.k == "valu":
        wv = {x for x in p.w if isv(x)}; ws = p.w - wv
        if c.k == "mfma" and wv & c.r: n = max(n, 2)
        if c.k == "valu":
            if wv & c.r:
                if c.dpp or c.perm: n = max(n, 2)
                if c.rdl or p.opsel: n = max(n, 1)
                if p.trans and not c.trans: n = max(n, 1)
            if ws & c.r: n = max(n, 4 if c.rdl else 2)
        if c.k == "vmem" and ws & c.r: n = max(n, 5)
    if p.k == "mfma":
        big = 12 if p.passes == 8 else 8
        if c.k == "mfma":
            if p.w & c.ab: n = max(n, big)
            if p.w & c.c and not (p.w == c.c and p.passes == c.passes): n = max(n, big - 2)
            if p.w & c.w and not (p.w & c.c): n = max(n, big - 2)
        elif c.k in ("valu","ds","vmem"):
            if p.w & (c.r | c.w): n = max(n, big)
            if c.k == "valu" and p.c & c.w: n = max(n, 7 if p.passes == 8 else 3)
    if p.k == "vmem" and p.wide and p.data & c.w: n = max(n, 2)
    if p.k == "salu" and ("s","m0") in p.w and c.k == "vmem" and c.lds: n = max(n, 1)
    return n
def fix(lines, report=None, tm=True):
    out = []; hist = []; added = 0; t = 0; lastm = None
    for l in lines:
        i = parse(l)
        if i is None:
            if l.strip().endswith(":"): lastm = None
            out.append(l); continue
        t0 = t
        if tm and i.k == "mfma" and lastm is not None: t0 = max(t0, lastm.t + lastm.passes)
        req = t0
        for p in hist: req = max(req, p.t + p.states + need(p, i)) if need(p, i) else req
        if req > t0:
            pad = req - t
            while pad > 0:
                q = min(pad, 16); out.append(f"    s_nop {q-1}"); pad -= q; added += q
            if report is not None: report.append((len(out), req - t, l.strip()))
            t0 = req
        i.t = t0; t = t0 + i.states
        if i.k == "mfma": lastm = i
        out.append(l); hist.append(i); hist = hist[-16:]
    return out, added
```

```python
import sys
from common import *
import hz, common
from r_ln import *; from r_gemm import *; from r_mlp import *; from r_attn import *; import r_chain as rc; import r_chain2 as rc2
NAME = "recurrent_scan__memory_aug_recurrent_mem_tr__moe_arch_mod__prompt"
def chain(a, merged, cfg):
    rc.chain_prologue(a, merged)
    g = a.label("gen")
    a(f"s_cmp_eq_u32 s76, 2\n s_cbranch_scc1 {g}")
    for gen in (False, True):
        if gen: a(f"{g}:")
        if gen and cfg.get("nogen"): a(f"s_branch L_exit_{a.kn}"); continue
        rc2.chain_loop(a, gen, cfg)
        a(f"s_branch L_exit_{a.kn}")
def count(a, off):
    a(f"v_mov_b32 v4, 0\n v_mov_b32 v5, 1\n s_mov_b64 exec, 1\n buffer_atomic_add v5, v4, {DBG}, 0 offen offset:{off} sc1\n s_mov_b64 exec, -1")
def wait_cnt(a, off, val, nm):
    a("v_mov_b32 v5, 0")
    spin(a, f"buffer_load_dword v6, v5, {DBG}, 0 offen offset:{off} sc1", f"v_cmp_gt_u32 vcc, {val}, v6", 27, nm)
def merged(cfg):
    a = Asm(); a.kn = NAME + "_kernel"; a.stamp_on = cfg.get("stamp")
    prologue(a, 256); stamp(a, 0)
    dsp = a.label("dsp"); wk = a.label("wk"); gen = f"L_gen_{a.kn}"
    a(f"""s_getreg_b32 s73, hwreg(HW_REG_XCC_ID)
    s_and_b32 s73, s73, 7
    s_lshr_b32 s33, s2, 3
    s_lshl_b32 s{sJ}, s73, 5
    s_add_u32 s{sJ}, s{sJ}, s33
    s_mov_b32 s76, 1
    s_mov_b32 s77, 0
    s_lshl_b32 s26, s2, 8
    s_min_u32 s26, s26, {(NFL-2)*128}
    s_add_u32 s26, s26, {FL}
    v_lshlrev_b32 v1, 2, v0
    v_mov_b32 v2, 0
    s_cmp_lg_u32 s{sW}, 0
    s_cbranch_scc1 {dsp}
    buffer_store_dword v2, v1, {WS}, s26 offen sc1
    {dsp}:
    s_mov_b32 s3, s{sJ}
    s_lshr_b32 s32, s{sJ}, 5
    s_and_b32 s33, s{sJ}, 31
    s_cmp_ge_u32 s{sJ}, 64
    s_cbranch_scc1 {wk}""")
    chain(a, True, cfg)
    a(f"{wk}:\n s_sub_u32 s{sJ}, s{sJ}, 64\n s_waitcnt vmcnt(0)"); arrive(a)
    gemm_ids(a)
    nl = a.label("nl")
    a(f"s_cmp_lg_u32 s32, 2\n s_cbranch_scc1 {nl}\n s_lshl_b32 s35, s34, 5\n s_add_u32 s35, s35, s33")
    P, X = role_ln(a, 35)
    verify(a, 4); flag_store(a, 29, "1"); stamp(a, 2)
    role_ln2(a, P, X); a("s_waitcnt vmcnt(0)"); flag_store(a, 29, "2")
    a(f"{nl}:")
    gemm_wload(a); gemm_wread(a); stamp(a, 3); verify(a, 4); wait_ln(a, 1); stamp(a, 4); gemm_main(a); stamp(a, 5)
    at = a.label("at"); wo = a.label("wo"); m2 = a.label("m2")
    a(f"s_cmp_ge_u32 s{sJ}, 160\n s_cbranch_scc1 {at}\n s_cmp_ge_u32 s{sJ}, 148\n s_cbranch_scc1 {wo}")
    wait_ln(a, 2); topk(a)
    a(f"s_cmp_ge_u32 s{sJ}, 108\n s_cbranch_scc1 {m2}")
    d = role_mlp1(a, sJ); count(a, D_M1); a(f"{d}:\n s_branch {wo}\n {m2}:\n s_sub_u32 s35, s{sJ}, 108")
    wait_cnt(a, D_M1, hex(108), "wm1")
    d = role_mlp2(a, 35); count(a, D_M2); a(f"{d}:\n {wo}:"); stamp(a, 6)
    role_wo(a, sJ, True)
    a(f"s_branch L_exit_{a.kn}\n {at}:\n s_sub_u32 s42, s{sJ}, 160")
    role_attn(a, 42, True)
    a(f"s_branch L_exit_{a.kn}")
    nw = a.label("gw")
    a(f"""{gen}:
    s_waitcnt vmcnt(0) lgkmcnt(0)
    s_barrier
    v_mov_b32 v1, 0
    s_cmp_lg_u32 s{sW}, 0
    s_cbranch_scc1 {nw}
    s_mov_b64 exec, 1
    v_mov_b32 v2, 1
    buffer_atomic_add v2, v1, {DBG}, 0 offen offset:{D_GT} sc0 sc1
    s_waitcnt vmcnt(0)
    ds_write_b32 v1, v2
    s_waitcnt lgkmcnt(0)
    s_mov_b64 exec, -1
    {nw}:
    s_barrier
    ds_read_b32 v2, v1
    s_waitcnt lgkmcnt(0)
    v_readfirstlane_b32 s{sJ}, v2
    s_mov_b32 s76, 2
    s_mov_b32 s77, 3
    v_mbcnt_lo_u32_b32 v0, -1, 0
    v_mbcnt_hi_u32_b32 v0, -1, v0
    s_barrier""")
    wait_cnt(a, D_GT, hex(256), "wgt")
    a(f"s_cmp_lt_u32 s{sJ}, 256\n s_cbranch_scc1 {dsp}")
    a(f"L_exit_{a.kn}:")
    if a.stamp_on:
        nx = a.label("nst")
        a(f"s_cmp_ge_u32 s2, 256\n s_cbranch_scc1 {nx}"); stamp(a, 10)
        a(f"s_lshl_b32 s26, s3, 2\n s_add_u32 s26, s26, s{sW}\n s_lshl_b32 s26, s26, 6\n s_add_u32 s26, s26, 0x7100000\n v_mov_b32 v1, 0")
        for i in range(11): a(f"v_mov_b32 v2, s{78+2*i}\n buffer_store_dword v2, v1, {WS}, s26 offen offset:{4*i}")
        a(f"{nx}:")
    a("s_endpgm")
    lines, n = hz.fix(a.lines, tm=cfg.get("tm", True))
    return "; @launch grid=(256,1,1) block=(256,1,1) lds=163840\n" + HEADER + kernel_begin(a.kn) + "\n".join(lines) + "\n" + kernel_desc(a.kn, 512, 256)
if __name__ == "__main__":
    cfg = eval(sys.argv[2]) if len(sys.argv) > 2 else {}
    if cfg.get("forcegen"): common.FORCEGEN = True
    open(sys.argv[1], "w").write(merged(cfg))
```

```python
import sys
from common import *
import hz, common
from r_ln import *; from r_gemm import *; from r_mlp import *; from r_attn import *; import r_chain as rc; import r_chain2 as rc2
NAME = "recurrent_scan__memory_aug_recurrent_mem_tr__moe_arch_mod__prompt"
def chain(a, merged, cfg):
    rc.chain_prologue(a, merged)
    if cfg.get("ponly"): a(f"s_branch L_exit_{a.kn}")
    g = a.label("gen")
    a(f"s_cmp_eq_u32 s76, 2\n s_cbranch_scc1 {g}")
    for gen in (False, True):
        if gen: a(f"{g}:")
        if gen and cfg.get("nogen"): a(f"s_branch L_exit_{a.kn}"); continue
        rc2.chain_loop(a, gen, cfg)
        a(f"s_branch L_exit_{a.kn}")
def count(a, off):
    a(f"v_mov_b32 v4, 0\n v_mov_b32 v5, 1\n s_mov_b64 exec, 1\n buffer_atomic_add v5, v4, {DBG}, 0 offen offset:{off} sc1\n s_mov_b64 exec, -1")
def wait_cnt(a, off, val, nm):
    a("v_mov_b32 v5, 0")
    spin(a, f"buffer_load_dword v6, v5, {DBG}, 0 offen offset:{off} sc1", f"v_cmp_gt_u32 vcc, {val}, v6", 27, nm)
def merged(cfg):
    a = Asm(); a.kn = NAME + "_kernel"; a.stamp_on = cfg.get("stamp")
    prologue(a, 256); stamp(a, 0)
    if a.stamp_on: a("s_getreg_b32 s80, hwreg(HW_REG_HW_ID)")
    dsp = a.label("dsp"); wk = a.label("wk"); gen = f"L_gen_{a.kn}"
    a(f"""s_getreg_b32 s73, hwreg(HW_REG_XCC_ID)
    s_and_b32 s73, s73, 7
    s_lshr_b32 s33, s2, 3
    s_lshl_b32 s{sJ}, s73, 5
    s_add_u32 s{sJ}, s{sJ}, s33
    s_mov_b32 s76, 1
    s_mov_b32 s77, 0
    s_lshl_b32 s26, s2, 8
    s_min_u32 s26, s26, {(NFL-2)*128}
    s_add_u32 s26, s26, {FL}
    v_lshlrev_b32 v1, 2, v0
    v_mov_b32 v2, 0
    s_cmp_lg_u32 s{sW}, 0
    s_cbranch_scc1 {dsp}
    buffer_store_dword v2, v1, {WS}, s26 offen sc1
    {dsp}:
    s_mov_b32 s3, s{sJ}
    s_lshr_b32 s32, s{sJ}, 5
    s_and_b32 s33, s{sJ}, 31
    s_cmp_ge_u32 s{sJ}, 64
    s_cbranch_scc1 {wk}""")
    chain(a, True, cfg)
    a(f"{wk}:\n s_sub_u32 s{sJ}, s{sJ}, 64\n s_waitcnt vmcnt(0)"); arrive(a)
    gemm_ids(a)
    po = cfg.get("ponly")
    if po == 1: a(f"s_branch L_exit_{a.kn}")
    if po == 2: a(f"s_cmp_eq_u32 s32, 2\n s_cbranch_scc1 L_exit_{a.kn}")
    nl = a.label("nl")
    a(f"s_cmp_lg_u32 s32, 2\n s_cbranch_scc1 {nl}\n s_lshl_b32 s35, s34, 5\n s_add_u32 s35, s35, s33")
    P, X = role_ln(a, 35)
    verify(a, 4); flag_store(a, 29, "1"); stamp(a, 2)
    role_ln2(a, P, X); a("s_waitcnt vmcnt(0)"); flag_store(a, 29, "2")
    if cfg.get("qd"): wait_cnt(a, D_WL, cfg["qd"], "wwl")
    n2 = a.label("n2"); a(f"s_branch {n2}\n {nl}:")
    for i, ko in enumerate(cfg.get("pf", [])):
        if i == 0: a(f"s_lshl_b32 s26, s34, 1\n s_add_u32 s26, s26, s32\n s_lshl_b32 s26, s26, 5\n s_add_u32 s26, s26, s33\n s_lshl_b32 s26, s26, 2\n s_add_u32 s26, s26, s{sW}\n s_mul_i32 s30, s26, 10240\n s_add_u32 s31, s30, 4096\n s_add_u32 s35, s30, 6144\n v_lshlrev_b32 v1, 6, v0")
        srd(a, 8, ko, 640*8192); a("s_waitcnt lgkmcnt(0)")
        for r in (30, 31, 35): a(f"buffer_load_dword v10, v1, s[8:11], s{r} offen")
    if cfg.get("xd") == 1: verify(a, 4); wait_cnt(a, D_WL, 64, "wwx")
    a(f"{n2}:")
    gemm_wload(a); gemm_wread(a); stamp(a, 3)
    if po: a(f"s_branch L_exit_{a.kn}")
    verify(a, 4); wait_ln(a, 1)
    if cfg.get("xd") == 2: wait_cnt(a, D_WL, 64, "wwy")
    stamp(a, 4); gemm_main(a); stamp(a, 5)
    at = a.label("at"); wo = a.label("wo"); m2 = a.label("m2")
    a(f"s_cmp_ge_u32 s{sJ}, 160\n s_cbranch_scc1 {at}\n s_cmp_ge_u32 s{sJ}, 148\n s_cbranch_scc1 {wo}")
    wait_ln(a, 2); topk(a)
    a(f"s_cmp_ge_u32 s{sJ}, 108\n s_cbranch_scc1 {m2}")
    d = role_mlp1(a, sJ); count(a, D_M1); a(f"{d}:\n s_branch {wo}\n {m2}:\n s_sub_u32 s35, s{sJ}, 108")
    wait_cnt(a, D_M1, hex(108), "wm1")
    d = role_mlp2(a, 35); count(a, D_M2); a(f"{d}:\n {wo}:"); stamp(a, 6)
    role_wo(a, sJ, True)
    a(f"s_branch L_exit_{a.kn}\n {at}:\n s_sub_u32 s42, s{sJ}, 160")
    role_attn(a, 42, True)
    a(f"s_branch L_exit_{a.kn}")
    nw = a.label("gw")
    a(f"""{gen}:
    s_waitcnt vmcnt(0) lgkmcnt(0)
    s_barrier
    v_mov_b32 v1, 0
    s_cmp_lg_u32 s{sW}, 0
    s_cbranch_scc1 {nw}
    s_mov_b64 exec, 1
    v_mov_b32 v2, 1
    buffer_atomic_add v2, v1, {DBG}, 0 offen offset:{D_GT} sc0 sc1
    s_waitcnt vmcnt(0)
    ds_write_b32 v1, v2
    s_waitcnt lgkmcnt(0)
    s_mov_b64 exec, -1
    {nw}:
    s_barrier
    ds_read_b32 v2, v1
    s_waitcnt lgkmcnt(0)
    v_readfirstlane_b32 s{sJ}, v2
    s_mov_b32 s76, 2
    s_mov_b32 s77, 3
    v_mbcnt_lo_u32_b32 v0, -1, 0
    v_mbcnt_hi_u32_b32 v0, -1, v0
    s_barrier""")
    wait_cnt(a, D_GT, hex(256), "wgt")
    a(f"s_cmp_lt_u32 s{sJ}, 256\n s_cbranch_scc1 {dsp}")
    a(f"L_exit_{a.kn}:")
    if a.stamp_on:
        nx = a.label("nst")
        a(f"s_cmp_ge_u32 s2, 256\n s_cbranch_scc1 {nx}"); stamp(a, 10)
        a(f"s_lshl_b32 s26, s3, 2\n s_add_u32 s26, s26, s{sW}\n s_lshl_b32 s26, s26, 6\n s_add_u32 s26, s26, 0x7100000\n v_mov_b32 v1, 0")
        for i in range(11): a(f"v_mov_b32 v2, s{78+2*i}\n buffer_store_dword v2, v1, {WS}, s26 offen offset:{4*i}")
        a(f"{nx}:")
    a("s_endpgm")
    lines, n = hz.fix(a.lines, tm=cfg.get("tm", True))
    return "; @launch grid=(256,1,1) block=(256,1,1) lds=163840\n" + HEADER + kernel_begin(a.kn) + "\n".join(lines) + "\n" + kernel_desc(a.kn, 512, 256)
if __name__ == "__main__":
    cfg = eval(sys.argv[2]) if len(sys.argv) > 2 else {}
    if cfg.get("forcegen"): common.FORCEGEN = True
    open(sys.argv[1], "w").write(merged(cfg))
```

```python
from asmlib import *
XN=0x0; GA=0x280000; RA=0x500000; HM=0x510000; FL=0x520000
RSB=0x600000; AGL=0x700000; AGR=0x800000; RSS=0x40000
QX=0x1000000; KX=0x2000000; VX=0x3000000; OA=0x4000000; XM=0x5000000; VM=0x5800000
F_LN=FL; F_G=FL+64*128; F_PUB=FL+256*128; F_O=FL+320*128; NFL=352
WS="s[4:7]"; SA_="s[8:11]"; SB_="s[12:15]"; SC_="s[16:19]"; DBG="s[20:23]"
sW=24; sJ=25
SPIN=400000
LOG2E=1.4426950408889634
import struct
def f2u(x): return "0x%08x" % struct.unpack("<I", struct.pack("<f", x))[0]
def srd(a, d, koff, nbytes):
    a(f"s_load_dwordx2 s[{d}:{d+1}], s[0:1], {koff}\n s_mov_b32 s{d+2}, {hex(nbytes)}\n s_mov_b32 s{d+3}, 0x00020000")
def prologue(a, ngrid):
    a(f"s_cmp_ge_u32 s2, {ngrid}\n s_cbranch_scc1 L_exit_{a.kn}")
    srd(a, 4, 112, 0x10000000); srd(a, 20, 104, 256)
    a(f"v_lshrrev_b32 v1, 6, v0\n v_and_b32 v0, 63, v0\n v_readfirstlane_b32 s{sW}, v1\n s_waitcnt lgkmcnt(0)")
def spin(a, loads, check, cnt, name):
    l = a.label(name); ok = a.label(name + "ok")
    a(f"s_mov_b32 s{cnt}, 0\n {l}:")
    a(loads); a("s_waitcnt vmcnt(0)"); a(check)
    a(f"""s_cbranch_vccz {ok}
    s_add_u32 s{cnt}, s{cnt}, 1
    s_cmp_lt_u32 s{cnt}, {SPIN}
    s_cbranch_scc0 L_exit_{a.kn}
    s_sleep 2
    s_branch {l}
    {ok}:""")
def bf_unpack(a, lo, hi, src):
    a(f"v_lshlrev_b32 v{lo}, 16, v{src}\n v_and_b32 v{hi}, 0xffff0000, v{src}")
def red8(a, v, t, op="v_add_f32"):
    a(f"""{op}_dpp v{v}, v{v}, v{v} quad_perm:[1,0,3,2] row_mask:0xf bank_mask:0xf
    {op}_dpp v{v}, v{v}, v{v} quad_perm:[2,3,0,1] row_mask:0xf bank_mask:0xf
    {op}_dpp v{v}, v{v}, v{v} row_half_mirror row_mask:0xf bank_mask:0xf""")
def silu(a, dst, x, t):
    a(f"""v_mul_f32 v{t}, {f2u(-LOG2E)}, v{x}
    v_exp_f32 v{t}, v{t}
    v_add_f32 v{t}, 1.0, v{t}
    v_rcp_f32 v{t}, v{t}
    v_mul_f32 v{dst}, v{x}, v{t}""")

ARR = [0]
def stamp(a, i):
    if getattr(a, "stamp_on", None): a(f"s_memrealtime s[{78+2*i}:{79+2*i}]\n s_waitcnt lgkmcnt(0)")
    if i == 4 and ARR[0]: a("s_memtime s[100:101]\n s_waitcnt lgkmcnt(0)")

D_GT=128; D_M1=132; D_M2=136; D_RDY=140; D_WL=148
FORCEGEN = False
def arrive(a, t=4):
    n = a.label("na")
    a(f"""s_bitcmp1_b32 s77, 0
    s_cbranch_scc1 {n}
    s_or_b32 s77, s77, 1
    s_cmp_lg_u32 s{sW}, 0
    s_cbranch_scc1 {n}
    s_lshr_b32 s26, s2, 3
    s_lshl_b32 s26, 1, s26
    s_lshl_b32 s27, s73, 3
    v_mov_b32 v{t}, s26
    v_mov_b32 v{t+1}, 0x100
    v_mov_b32 v{t+2}, 0
    s_mov_b64 exec, 1
    buffer_atomic_add_x2 v[{t}:{t+1}], v{t+2}, {DBG}, s27 offen offset:{ARR[0]} sc1
    s_mov_b64 exec, -1
    {n}:""")
def ver_addr(a, t, lane="v0", sh=2):
    a(f"v_lshlrev_b32 v{t}, {sh}, {lane}\n v_and_b32 v{t}, 60, v{t}" if sh >= 0 else f"v_lshrrev_b32 v{t}, {-sh}, {lane}\n v_and_b32 v{t}, 60, v{t}")
def verify(a, t, lane="v0", sh=2):
    l = a.label("vf"); ok = a.label("vok"); fu = a.label("vfu"); tr = a.label("vtr")
    a(f"s_bitcmp1_b32 s77, 1\n s_cbranch_scc1 {tr}"); ver_addr(a, t, lane, sh)
    a(f"""s_mov_b32 s72, 0
    {l}:
    buffer_load_dword v{t+1}, v{t}, {DBG}, 0 offen offset:{ARR[0]} sc1
    s_waitcnt vmcnt(0)
    v_lshrrev_b32 v{t+2}, 8, v{t+1}
    v_add_u32_dpp v{t+2}, v{t+2}, v{t+2} quad_perm:[2,3,0,1] row_mask:0xf bank_mask:0xf
    v_add_u32_dpp v{t+2}, v{t+2}, v{t+2} row_ror:4 row_mask:0xf bank_mask:0xf
    v_add_u32_dpp v{t+2}, v{t+2}, v{t+2} row_ror:8 row_mask:0xf bank_mask:0xf
    v_readlane_b32 s70, v{t+2}, 1
    s_cmp_ge_u32 s70, 0x100
    s_cbranch_scc1 {fu}
    s_add_u32 s72, s72, 1
    s_cmp_lt_u32 s72, {SPIN}
    s_cbranch_scc1 {l}
    s_branch L_exit_{a.kn}
    {fu}:
    s_cmp_gt_u32 s70, 0x100
    s_cbranch_scc1 L_exit_{a.kn}
    v_mov_b32 v{t+2}, {'0x2000' if not FORCEGEN else '0x2001'}
    v_bfe_u32 v{t}, v{t}, 2, 1
    v_cmp_eq_u32 vcc, 1, v{t}
    v_cndmask_b32 v{t+2}, -1, v{t+2}, vcc
    v_cmp_ne_u32 vcc, v{t+1}, v{t+2}
    s_cbranch_vccnz L_gen_{a.kn}
    s_or_b32 s77, s77, 2
    {tr}:
    s_waitcnt vmcnt(0)""")
```

```python
import sys
from common import *
import hz, common
from r_ln import *; from r_gemm import *; from r_mlp import *; from r_attn import *; import r_chain as rc; import r_chain2 as rc2
NAME = "recurrent_scan__memory_aug_recurrent_mem_tr__moe_arch_mod__prompt"
def chain(a, merged, cfg):
    rc.chain_prologue(a, merged)
    if cfg.get("ponly"): a(f"s_branch L_exit_{a.kn}")
    g = a.label("gen")
    a(f"s_cmp_eq_u32 s76, 2\n s_cbranch_scc1 {g}")
    for gen in (False, True):
        if gen: a(f"{g}:")
        if gen and cfg.get("nogen"): a(f"s_branch L_exit_{a.kn}"); continue
        rc2.chain_loop(a, gen, cfg)
        a(f"s_branch L_exit_{a.kn}")
def count(a, off):
    a(f"v_mov_b32 v4, 0\n v_mov_b32 v5, 1\n s_mov_b64 exec, 1\n buffer_atomic_add v5, v4, {DBG}, 0 offen offset:{off} sc1\n s_mov_b64 exec, -1")
def wait_cnt(a, off, val, nm):
    a("v_mov_b32 v5, 0")
    spin(a, f"buffer_load_dword v6, v5, {DBG}, 0 offen offset:{off} sc1", f"v_cmp_gt_u32 vcc, {val}, v6", 27, nm)
def merged(cfg):
    a = Asm(); a.kn = NAME + "_kernel"; a.stamp_on = cfg.get("stamp")
    prologue(a, 256); stamp(a, 0)
    if a.stamp_on: a("s_getreg_b32 s80, hwreg(HW_REG_HW_ID)")
    dsp = a.label("dsp"); wk = a.label("wk"); gen = f"L_gen_{a.kn}"
    a(f"""s_getreg_b32 s73, hwreg(HW_REG_XCC_ID)
    s_and_b32 s73, s73, 7
    s_lshr_b32 s33, s2, 3
    s_lshl_b32 s{sJ}, s73, 5
    s_add_u32 s{sJ}, s{sJ}, s33
    s_mov_b32 s76, 1
    s_mov_b32 s77, 0
    s_lshl_b32 s26, s2, 8
    s_min_u32 s26, s26, {(NFL-2)*128}
    s_add_u32 s26, s26, {FL}
    v_lshlrev_b32 v1, 2, v0
    v_mov_b32 v2, 0
    s_cmp_lg_u32 s{sW}, 0
    s_cbranch_scc1 {dsp}
    buffer_store_dword v2, v1, {WS}, s26 offen sc1
    {dsp}:
    s_mov_b32 s3, s{sJ}
    s_lshr_b32 s32, s{sJ}, 5
    s_and_b32 s33, s{sJ}, 31
    s_cmp_ge_u32 s{sJ}, 64
    s_cbranch_scc1 {wk}""")
    chain(a, True, cfg)
    a(f"{wk}:\n s_sub_u32 s{sJ}, s{sJ}, 64\n s_waitcnt vmcnt(0)"); arrive(a)
    gemm_ids(a)
    po = cfg.get("ponly")
    if po == 1: a(f"s_branch L_exit_{a.kn}")
    if po == 2: a(f"s_cmp_eq_u32 s32, 2\n s_cbranch_scc1 L_exit_{a.kn}")
    nl = a.label("nl")
    a(f"s_cmp_lg_u32 s32, 2\n s_cbranch_scc1 {nl}\n s_lshl_b32 s35, s34, 5\n s_add_u32 s35, s35, s33")
    P, X = role_ln(a, 35)
    verify(a, 4); flag_store(a, 29, "1"); stamp(a, 2)
    role_ln2(a, P, X); a("s_waitcnt vmcnt(0)"); flag_store(a, 29, "2")
    if cfg.get("qd"): wait_cnt(a, D_WL, cfg["qd"], "wwl")
    n2 = a.label("n2"); a(f"s_branch {n2}\n {nl}:")
    for i, ko in enumerate(cfg.get("pf", [])):
        if i == 0: a(f"s_lshl_b32 s26, s34, 1\n s_add_u32 s26, s26, s32\n s_lshl_b32 s26, s26, 5\n s_add_u32 s26, s26, s33\n s_lshl_b32 s26, s26, 2\n s_add_u32 s26, s26, s{sW}\n s_mul_i32 s30, s26, 10240\n s_add_u32 s31, s30, 4096\n s_add_u32 s35, s30, 6144\n v_lshlrev_b32 v1, 6, v0")
        srd(a, 8, ko, 640*8192); a("s_waitcnt lgkmcnt(0)")
        for r in (30, 31, 35): a(f"buffer_load_dword v10, v1, s[8:11], s{r} offen")
    if cfg.get("xd") == 1: verify(a, 4); wait_cnt(a, D_WL, 64, "wwx")
    a(f"{n2}:")
    gemm_wload(a); gemm_wread(a); stamp(a, 3)
    if po: a(f"s_branch L_exit_{a.kn}")
    verify(a, 4); wait_ln(a, 1)
    if cfg.get("xd") == 2: wait_cnt(a, D_WL, 64, "wwy")
    stamp(a, 4); gemm_main(a); stamp(a, 5)
    at = a.label("at"); wo = a.label("wo"); m2 = a.label("m2")
    a(f"s_cmp_ge_u32 s{sJ}, 160\n s_cbranch_scc1 {at}\n s_cmp_ge_u32 s{sJ}, 148\n s_cbranch_scc1 {wo}")
    wait_ln(a, 2); topk(a)
    a(f"s_cmp_ge_u32 s{sJ}, 108\n s_cbranch_scc1 {m2}")
    d = role_mlp1(a, sJ); count(a, D_M1); a(f"{d}:\n s_branch {wo}\n {m2}:\n s_sub_u32 s35, s{sJ}, 108")
    wait_cnt(a, D_M1, hex(108), "wm1")
    d = role_mlp2(a, 35); count(a, D_M2); a(f"{d}:\n {wo}:"); stamp(a, 6)
    role_wo(a, sJ, True)
    a(f"s_branch L_exit_{a.kn}\n {at}:\n s_sub_u32 s42, s{sJ}, 160")
    role_attn(a, 42, True)
    a(f"s_branch L_exit_{a.kn}")
    nw = a.label("gw")
    a(f"""{gen}:
    s_waitcnt vmcnt(0) lgkmcnt(0)
    s_barrier
    v_mov_b32 v1, 0
    s_cmp_lg_u32 s{sW}, 0
    s_cbranch_scc1 {nw}
    s_mov_b64 exec, 1
    v_mov_b32 v2, 1
    buffer_atomic_add v2, v1, {DBG}, 0 offen offset:{D_GT} sc0 sc1
    s_waitcnt vmcnt(0)
    ds_write_b32 v1, v2
    s_waitcnt lgkmcnt(0)
    s_mov_b64 exec, -1
    {nw}:
    s_barrier
    ds_read_b32 v2, v1
    s_waitcnt lgkmcnt(0)
    v_readfirstlane_b32 s{sJ}, v2
    s_mov_b32 s76, 2
    s_mov_b32 s77, 3
    v_mbcnt_lo_u32_b32 v0, -1, 0
    v_mbcnt_hi_u32_b32 v0, -1, v0
    s_barrier""")
    wait_cnt(a, D_GT, hex(256), "wgt")
    a(f"s_cmp_lt_u32 s{sJ}, 256\n s_cbranch_scc1 {dsp}")
    a(f"L_exit_{a.kn}:")
    if a.stamp_on:
        nx = a.label("nst")
        a(f"s_cmp_ge_u32 s2, 256\n s_cbranch_scc1 {nx}"); stamp(a, 10)
        if cfg.get("dbgout"):
            n3 = a.label("n3"); n4 = a.label("n4")
            def mx(w, i): a(f"s_sub_u32 s27, s{78+2*i}, s78\n v_mov_b32 v2, s27\n buffer_atomic_umax v2, v1, {DBG}, 0 offen offset:{4*w} sc1")
            a(f"v_mov_b32 v1, 0\n s_mov_b64 exec, 1\n s_cmp_ge_u32 s3, 64\n s_cbranch_scc1 {n3}")
            for w, i in ((0, 2), (1, 3), (2, 4), (3, 10)): mx(w, i)
            a(f"s_memtime s[28:29]\n s_waitcnt lgkmcnt(0)\n s_sub_u32 s28, s28, s100\n s_sub_u32 s27, s98, s86\n s_cmp_lg_u32 s3, 0\n s_cbranch_scc1 {n4}")
            a(f"v_mov_b32 v2, s28\n buffer_store_dword v2, v1, {DBG}, 0 offen offset:16 sc1\n v_mov_b32 v3, s27\n buffer_store_dword v3, v1, {DBG}, 0 offen offset:20 sc1\n s_branch {n4}\n {n3}:")
            for w, i in ((8, 3), (9, 4), (10, 5), (12, 10)): mx(w, i)
            a(f"{n4}:\n s_waitcnt vmcnt(0)\n s_mov_b64 exec, -1\n s_branch {nx}")
        a(f"s_lshl_b32 s26, s3, 2\n s_add_u32 s26, s26, s{sW}\n s_lshl_b32 s26, s26, 6\n s_add_u32 s26, s26, 0x7100000\n v_mov_b32 v1, 0")
        for i in range(11): a(f"v_mov_b32 v2, s{78+2*i}\n buffer_store_dword v2, v1, {WS}, s26 offen offset:{4*i}")
        a(f"{nx}:")
    a("s_endpgm")
    lines, n = hz.fix(a.lines, tm=cfg.get("tm", True))
    return "; @launch grid=(256,1,1) block=(256,1,1) lds=163840\n" + HEADER + kernel_begin(a.kn) + "\n".join(lines) + "\n" + kernel_desc(a.kn, 512, 256)
if __name__ == "__main__":
    cfg = eval(sys.argv[2]) if len(sys.argv) > 2 else {}
    if cfg.get("forcegen"): common.FORCEGEN = True
    if cfg.get("dbgout"): common.ARR[0] = 64
    rc.PRE[0] = cfg.get("pre", 4); common.SLPN.update(cfg.get("slp", {}))
    import r_attn; r_attn.LASTP[:] = [cfg.get("lastp", 1), cfg.get("dfl", 1), cfg.get("sp", 0)]; rc.NLA[0] = r_attn.LASTP[0]
    open(sys.argv[1], "w").write(merged(cfg))
```

```python
from asmlib import *
XN=0x0; GA=0x280000; RA=0x500000; HM=0x510000; FL=0x520000
RSB=0x600000; AGL=0x700000; AGR=0x800000; RSS=0x40000
QX=0x1000000; KX=0x2000000; VX=0x3000000; OA=0x4000000; XM=0x5000000; VM=0x5800000
F_LN=FL; F_G=FL+64*128; F_PUB=FL+256*128; F_O=FL+320*128; NFL=352
WS="s[4:7]"; SA_="s[8:11]"; SB_="s[12:15]"; SC_="s[16:19]"; DBG="s[20:23]"
sW=24; sJ=25
SPIN=400000
LOG2E=1.4426950408889634
import struct
def f2u(x): return "0x%08x" % struct.unpack("<I", struct.pack("<f", x))[0]
def srd(a, d, koff, nbytes):
    a(f"s_load_dwordx2 s[{d}:{d+1}], s[0:1], {koff}\n s_mov_b32 s{d+2}, {hex(nbytes)}\n s_mov_b32 s{d+3}, 0x00020000")
def prologue(a, ngrid):
    a(f"s_cmp_ge_u32 s2, {ngrid}\n s_cbranch_scc1 L_exit_{a.kn}")
    srd(a, 4, 112, 0x10000000); srd(a, 20, 104, 256)
    a(f"v_lshrrev_b32 v1, 6, v0\n v_and_b32 v0, 63, v0\n v_readfirstlane_b32 s{sW}, v1\n s_waitcnt lgkmcnt(0)")
SLPN = {}
def spin(a, loads, check, cnt, name, pre=False):
    l = a.label(name); ok = a.label(name + "ok"); pl = a.label(name + "p")
    a(f"s_mov_b32 s{cnt}, 0")
    if pre: a(f"s_branch {pl}")
    a(f"{l}:"); a(loads)
    if pre: a(f"{pl}:")
    a("s_waitcnt vmcnt(0)"); a(check)
    a(f"""s_cbranch_vccz {ok}
    s_add_u32 s{cnt}, s{cnt}, 1
    s_cmp_lt_u32 s{cnt}, {SPIN}
    s_cbranch_scc0 L_exit_{a.kn}
    s_sleep {SLPN.get(name, 2)}
    s_branch {l}
    {ok}:""")
def bf_unpack(a, lo, hi, src):
    a(f"v_lshlrev_b32 v{lo}, 16, v{src}\n v_and_b32 v{hi}, 0xffff0000, v{src}")
def red8(a, v, t, op="v_add_f32"):
    a(f"""{op}_dpp v{v}, v{v}, v{v} quad_perm:[1,0,3,2] row_mask:0xf bank_mask:0xf
    {op}_dpp v{v}, v{v}, v{v} quad_perm:[2,3,0,1] row_mask:0xf bank_mask:0xf
    {op}_dpp v{v}, v{v}, v{v} row_half_mirror row_mask:0xf bank_mask:0xf""")
def silu(a, dst, x, t):
    a(f"""v_mul_f32 v{t}, {f2u(-LOG2E)}, v{x}
    v_exp_f32 v{t}, v{t}
    v_add_f32 v{t}, 1.0, v{t}
    v_rcp_f32 v{t}, v{t}
    v_mul_f32 v{dst}, v{x}, v{t}""")

ARR = [0]
def stamp(a, i):
    if getattr(a, "stamp_on", None): a(f"s_memrealtime s[{78+2*i}:{79+2*i}]\n s_waitcnt lgkmcnt(0)")
    if i == 4 and ARR[0]: a("s_memtime s[100:101]\n s_waitcnt lgkmcnt(0)")

D_GT=128; D_M1=132; D_M2=136; D_RDY=140; D_WL=148
FORCEGEN = False
def arrive(a, t=4):
    n = a.label("na")
    a(f"""s_bitcmp1_b32 s77, 0
    s_cbranch_scc1 {n}
    s_or_b32 s77, s77, 1
    s_cmp_lg_u32 s{sW}, 0
    s_cbranch_scc1 {n}
    s_lshr_b32 s26, s2, 3
    s_lshl_b32 s26, 1, s26
    s_lshl_b32 s27, s73, 3
    v_mov_b32 v{t}, s26
    v_mov_b32 v{t+1}, 0x100
    v_mov_b32 v{t+2}, 0
    s_mov_b64 exec, 1
    buffer_atomic_add_x2 v[{t}:{t+1}], v{t+2}, {DBG}, s27 offen offset:{ARR[0]} sc1
    s_mov_b64 exec, -1
    {n}:""")
def ver_addr(a, t, lane="v0", sh=2):
    a(f"v_lshlrev_b32 v{t}, {sh}, {lane}\n v_and_b32 v{t}, 60, v{t}" if sh >= 0 else f"v_lshrrev_b32 v{t}, {-sh}, {lane}\n v_and_b32 v{t}, 60, v{t}")
def ver_load(t): return f"buffer_load_dword v{t+1}, v{t}, {DBG}, 0 offen offset:{ARR[0]} sc1"
def verify(a, t, lane="v0", sh=2, pre=False):
    l = a.label("vf"); ok = a.label("vok"); fu = a.label("vfu"); tr = a.label("vtr")
    a(f"s_bitcmp1_b32 s77, 1\n s_cbranch_scc1 {tr}")
    if not pre: ver_addr(a, t, lane, sh)
    a("s_mov_b32 s72, 0")
    if pre: a(f"s_branch {ok}")
    a(f"""{l}:
    {ver_load(t)}
    {ok}:
    s_waitcnt vmcnt(0)
    v_lshrrev_b32 v{t+2}, 8, v{t+1}
    v_add_u32_dpp v{t+2}, v{t+2}, v{t+2} quad_perm:[2,3,0,1] row_mask:0xf bank_mask:0xf
    v_add_u32_dpp v{t+2}, v{t+2}, v{t+2} row_ror:4 row_mask:0xf bank_mask:0xf
    v_add_u32_dpp v{t+2}, v{t+2}, v{t+2} row_ror:8 row_mask:0xf bank_mask:0xf
    v_readlane_b32 s70, v{t+2}, 1
    s_cmp_ge_u32 s70, 0x100
    s_cbranch_scc1 {fu}
    s_add_u32 s72, s72, 1
    s_cmp_lt_u32 s72, {SPIN}
    s_cbranch_scc1 {l}
    s_branch L_exit_{a.kn}
    {fu}:
    s_cmp_gt_u32 s70, 0x100
    s_cbranch_scc1 L_exit_{a.kn}
    v_mov_b32 v{t+2}, {'0x2000' if not FORCEGEN else '0x2001'}
    v_bfe_u32 v{t}, v{t}, 2, 1
    v_cmp_eq_u32 vcc, 1, v{t}
    v_cndmask_b32 v{t+2}, -1, v{t+2}, vcc
    v_cmp_ne_u32 vcc, v{t+1}, v{t+2}
    s_cbranch_vccnz L_gen_{a.kn}
    s_or_b32 s77, s77, 2
    {tr}:
    s_waitcnt vmcnt(0)""")
```

```python
from common import *
from r_ln import flag_store
from r_mlp import rbf
CS = 128**-0.5 * LOG2E
def xmax(a, v, t, op):
    a(f"""v_mov_b32 v{t}, v{v}
    v_permlane32_swap_b32 v{t}, v{v}
    {op} v{v}, v{v}, v{t}
    v_mov_b32 v{t}, v{v}
    v_permlane16_swap_b32 v{t}, v{v}
    {op} v{v}, v{v}, v{t}""")
LASTP = [1]
def role_attn(a, sT, merged):
    a(f"""v_lshlrev_b32 v1, 4, v0
    v_lshlrev_b32 v2, 3, v0
    v_bfe_u32 v3, v0, 2, 1
    v_lshlrev_b32 v3, 7, v3
    v_and_b32 v4, 3, v0
    v_lshl_add_u32 v3, v4, 2, v3
    s_and_b32 s26, s{sW}, 1
    s_lshr_b32 s27, s{sW}, 1
    s_lshl_b32 s34, s{sT}, 13
    s_lshl_b32 s40, s26, 12
    s_add_u32 s40, s40, {QX}
    s_lshl_b32 s41, s27, 12
    s_add_u32 s41, s41, {VX}
    s_lshl_b32 s35, s{sT}, 12
    s_add_u32 s35, s35, {XM}
    s_lshl_b32 s36, s{sT}, 11
    s_lshl_b32 s28, s27, 10
    s_add_u32 s36, s36, s28
    s_add_u32 s36, s36, {VM}
    s_lshl_b32 s37, s26, 17
    s_lshl_b32 s28, s{sT}, 12
    s_add_u32 s37, s37, s28
    s_lshl_b32 s28, s27, 11
    s_add_u32 s37, s37, s28
    s_add_u32 s37, s37, {OA}
    s_lshl_b32 s38, s{sT}, 7
    s_lshl_b32 s28, s{sW}, 2
    s_add_u32 s38, s38, s28
    s_add_u32 s38, s38, {F_O}
    s_lshl_b32 s39, s{sT}, 8
    s_add_u32 s39, s39, {F_PUB}
    s_mov_b32 s32, 0
    s_mov_b32 s33, 0
    s_lshl_b32 s26, s26, 4
    v_and_b32 v4, 15, v0
    v_add_u32 v4, s26, v4
    v_lshrrev_b32 v5, 4, v0
    v_lshlrev_b32 v5, 2, v5
    v_sub_u32 v4, v4, v5""")
    for k in range(8): a(f"v_cmp_le_i32 s[{60+2*k}:{61+2*k}], {(k>>2)*16 + (k&3)}, v4")
    if merged:
        a(f"""v_bfe_u32 v5, v0, 2, 1
        v_lshlrev_b32 v5, 7, v5
        v_bfe_u32 v6, v0, 3, 2
        v_min_u32 v6, 2, v6
        v_lshl_add_u32 v5, v6, 13, v5
        v_and_b32 v6, 3, v0
        v_lshl_add_u32 v5, v6, 2, v5
        s_lshl_b32 s26, s{sT}, 8
        s_add_u32 s26, s26, {F_G}""")
        spin(a, f"buffer_load_dword v6, v5, {WS}, s26 offen sc1", "v_cmp_gt_u32 vcc, 32, v6", 27, "wg")
    stamp(a, 7)
    BUF = [64, 128]; X=16; VMr=32; S=40; P=52; O=192; NEG=58; T=59
    a(f"v_mov_b32 v{NEG}, {f2u(-1e30)}\n v_mov_b32 v{P+5}, 0\n v_mov_b32 v{VMr+4}, 0")
    def qkv(b):
        a(f"s_add_u32 s26, s34, s40\n s_add_u32 s27, s34, {KX}\n s_add_u32 s28, s27, 4096\n s_add_u32 s29, s34, s41")
        for k in range(16): a(f"buffer_load_dwordx4 v[{b+4*k}:{b+4*k+3}], v1, {WS}, s{26+k//4} offen offset:{(k%4)*1024}")
        a(f"s_add_u32 s34, s34, {32*8192}")
    qkv(BUF[0])
    lp = a.label("al"); a(f"{lp}:")
    for par in range(2):
        b = BUF[par]; Q=b; K=b+16; V=b+48
        sk = a.label("sk"); lastp = a.label("lp63"); lastb = a.label("lb63")
        def mrows(sc):
            return "\n".join([f"buffer_load_dwordx4 v[{X+4*u}:{X+4*u+3}], v1, {WS}, s35 offen offset:{u*1024}{sc}" for u in range(4)] +
                             [f"buffer_load_dwordx2 v[{VMr+2*t}:{VMr+2*t+1}], v2, {WS}, s36 offen offset:{t*512}{sc}" for t in range(2)])
        if par and LASTP[0]:
            a(f"s_cmp_lg_u32 s32, 63\n s_cbranch_scc1 {lastp}")
            spin(a, mrows(" sc1"), f"v_max3_u32 v6, v{X}, v{X+4}, v{X+8}\n v_max3_u32 v6, v6, v{X+12}, v{VMr}\n v_max_u32 v6, v6, v{VMr+2}\n v_cmp_eq_u32 vcc, -1, v6", 27, "wl")
            a(f"s_branch {lastb}\n {lastp}:")
        a(f"s_cmp_gt_u32 s33, s32\n s_cbranch_scc1 {sk}")
        spin(a, f"buffer_load_dword v6, v3, {WS}, s39 offen sc1", "v_cmp_ge_u32 vcc, s32, v6", 27, "wp")
        red8(a, 6, 7, "v_min_u32")
        a(f"v_readfirstlane_b32 s33, v6\n {sk}:")
        a(mrows(""))
        a(f"s_add_u32 s35, s35, {32*4096}\n s_add_u32 s36, s36, {32*2048}")
        qkv(BUF[1-par])
        a(f"{lastb}:\n s_waitcnt vmcnt(22)")
        for kt in range(2):
            for u in range(4):
                d = S+4+4*kt
                a(f"v_mfma_f32_16x16x32_bf16 v[{d}:{d+3}], v[{K+16*kt+4*u}:{K+16*kt+4*u+3}], v[{Q+4*u}:{Q+4*u+3}], {'0' if u == 0 else f'v[{d}:{d+3}]'}")
        a("s_waitcnt vmcnt(16)")
        for u in range(4): a(f"v_mfma_f32_16x16x32_bf16 v[{S}:{S+3}], v[{X+4*u}:{X+4*u+3}], v[{Q+4*u}:{Q+4*u+3}], {'0' if u == 0 else f'v[{S}:{S+3}]'}")
        a(f"s_mov_b32 s26, {f2u(128**-0.5)}")
        for k in range(2, 12, 2):
            a(f"v_cvt_pk_bf16_f32 v6, v{S+k}, v{S+k+1}"); bf_unpack(a, S+k, S+k+1, 6)
            a(f"v_mul_f32 v{S+k}, s26, v{S+k}\n v_mul_f32 v{S+k+1}, s26, v{S+k+1}\n v_cvt_pk_bf16_f32 v6, v{S+k}, v{S+k+1}"); bf_unpack(a, S+k, S+k+1, 6)
        for k in range(8): a(f"v_cndmask_b32 v{S+4+k}, v{NEG}, v{S+4+k}, s[{60+2*k}:{61+2*k}]")
        a(f"""v_max3_f32 v6, v{S+4}, v{S+5}, v{S+6}
        v_max3_f32 v6, v6, v{S+7}, v{S+8}
        v_max3_f32 v6, v6, v{S+9}, v{S+10}
        v_max3_f32 v6, v6, v{S+11}, v{S+2}
        v_max_f32 v6, v6, v{S+3}""")
        xmax(a, 6, T, "v_max_f32")
        for k in range(2, 12): a(f"v_sub_f32 v{S+k}, v{S+k}, v6\n v_mul_f32 v{S+k}, {f2u(LOG2E)}, v{S+k}")
        for k in range(2, 12): a(f"v_exp_f32 v{S+k}, v{S+k}")
        a(f"v_add_f32 v6, v{S+2}, v{S+3}")
        for k in range(4, 12): a(f"v_add_f32 v6, v6, v{S+k}")
        xmax(a, 6, T, "v_add_f32")
        a("v_rcp_f32 v6, v6")
        for k in range(2, 12): a(f"v_mul_f32 v{S+k}, v{S+k}, v6")
        for q in range(4): a(f"v_cvt_pk_bf16_f32 v{P+q}, v{S+4+2*q}, v{S+5+2*q}")
        a(f"v_cvt_pk_bf16_f32 v{P+4}, v{S+2}, v{S+3}\n v_cvt_pk_bf16_f32 v{VMr+5}, v{S+2}, v{S+3}")
        for t in range(4): a(f"v_mfma_f32_16x16x32_bf16 v[{O+4*t}:{O+4*t+3}], v[{V+4*t}:{V+4*t+3}], v[{P}:{P+3}], 0")
        for t in range(4): a(f"v_mfma_f32_16x16x16_bf16 v[{O+4*t}:{O+4*t+3}], v[{VMr+(t&2)}:{VMr+(t&2)+1}], v[{VMr+4 if t & 1 else P+4}:{VMr+5 if t & 1 else P+5}], v[{O+4*t}:{O+4*t+3}]")
        for q in range(8): a(f"v_cvt_pk_bf16_f32 v{O+16+q}, v{O+2*q}, v{O+2*q+1}")
        a(f"""buffer_store_dwordx4 v[{O+16}:{O+19}], v1, {WS}, s37 offen sc1
        buffer_store_dwordx4 v[{O+20}:{O+23}], v1, {WS}, s37 offen offset:1024 sc1
        s_add_u32 s37, s37, 262144
        s_add_u32 s32, s32, 1
        s_waitcnt vmcnt(0)""")
        flag_store(a, 38, "s32", 6)
    a(f"s_cmp_lt_u32 s32, 64\n s_cbranch_scc1 {lp}\n s_waitcnt vmcnt(0)")

def role_wo(a, sT, merged):
    srd(a, 8, 40, 4096*1280); srd(a, 12, 0, 2621440); srd(a, 16, 96, 2621440)
    a(f"""s_mul_i32 s26, s{sT}, 52429
    s_lshr_b32 s26, s26, 20
    s_mul_i32 s27, s26, 20
    s_sub_u32 s32, s{sT}, s27
    s_and_b32 s33, s26, 1
    s_lshr_b32 s34, s26, 1
    v_lshrrev_b32 v1, 2, v0
    v_mul_u32_u24 v1, 1280, v1
    v_and_b32 v2, 3, v0
    v_lshl_add_u32 v1, v2, 4, v1
    v_lshrrev_b32 v3, 2, v0
    v_lshlrev_b32 v3, 6, v3
    v_lshl_add_u32 v3, v2, 4, v3
    s_mul_i32 s27, s{sW}, 40960
    v_add_u32 v3, s27, v3
    s_mul_i32 s26, s{sW}, {1024*1280}
    s_lshl_b32 s28, s32, 6
    s_add_u32 s26, s26, s28
    s_waitcnt lgkmcnt(0)""")
    for rnd in range(2):
        a("s_mov_b32 m0, s27")
        for k in range(32):
            a(f"buffer_load_dwordx4 v1, {SA_}, s26 offen lds\n s_add_u32 s26, s26, {16*1280}\n s_add_u32 m0, m0, 1024")
        for k in range(32):
            i = rnd*16 + k//2; mh = k % 2
            a(f"s_waitcnt vmcnt({31-k})")
            for t in range(2): a(f"ds_read_b64_tr_b16 a[{8*i+4*t+2*mh}:{8*i+4*t+2*mh+1}], v3 offset:{k*1024+t*8}")
        a("s_waitcnt lgkmcnt(0)")
    a("s_barrier")
    if merged:
        a("v_mov_b32 v5, 0")
        spin(a, f"buffer_load_dword v6, v5, {DBG}, 0 offen offset:{D_M2} sc1", "v_cmp_gt_u32 vcc, 40, v6", 27, "wm2")
        stamp(a, 7)
    a(f"""v_lshlrev_b32 v1, 4, v0
    v_bfe_u32 v2, v0, 1, 3
    v_lshlrev_b32 v2, 7, v2
    v_and_b32 v3, 1, v0
    v_lshl_add_u32 v2, v3, 3, v2
    s_lshl_b32 s35, s{sW}, 10
    s_lshl_b32 s26, s33, 2
    s_add_u32 s35, s35, s26
    s_add_u32 s35, s35, {F_O}
    s_lshl_b32 s36, s34, 18
    s_lshl_b32 s26, s33, 17
    s_add_u32 s36, s36, s26
    s_lshl_b32 s26, s{sW}, 15
    s_add_u32 s36, s36, s26
    s_add_u32 s36, s36, {OA}
    v_and_b32 v3, 15, v0
    v_mul_u32_u24 v3, 1280, v3
    v_lshrrev_b32 v4, 4, v0
    v_lshl_add_u32 v3, v4, 4, v3
    s_lshl_b32 s37, s34, 1
    s_add_u32 s37, s37, s33
    s_mul_i32 s37, s37, {16*1280}
    s_lshl_b32 s26, s32, 6
    s_add_u32 s37, s37, s26
    s_mov_b32 s38, 0
    s_lshl_b32 s39, s{sW}, 11""")
    lp = a.label("wl"); a(f"{lp}:")
    spin(a, f"buffer_load_dword v6, v2, {WS}, s35 offen sc1", "v_cmp_ge_u32 vcc, s34, v6", 27, "wo")
    B=64; D=8
    a(f"s_add_u32 s27, s37, {GA}\n buffer_load_dwordx4 v[16:19], v3, {SB_}, s37 offen\n buffer_load_dwordx4 v[20:23], v3, {WS}, s27 offen\n s_mov_b32 s26, s36")
    for i in range(32):
        a(f"buffer_load_dwordx4 v[{B+4*i}:{B+4*i+3}], v1, {WS}, s26 offen offset:{(i%4)*1024}")
        if i % 4 == 3: a("s_add_u32 s26, s26, 4096")
    for i in range(32):
        a(f"s_waitcnt vmcnt({31-i})")
        for t in range(2): a(f"v_mfma_f32_16x16x32_bf16 v[{D+4*t}:{D+4*t+3}], a[{8*i+4*t}:{8*i+4*t+3}], v[{B+4*i}:{B+4*i+3}], {'0' if i == 0 else f'v[{D+4*t}:{D+4*t+3}]'}")
    nx = a.label("nx")
    a(f"""s_add_u32 s26, s38, s39
    v_add_u32 v4, s26, v1
    v_add_u32 v5, s38, v1
    ds_write_b128 v4, v[8:11]
    ds_write_b128 v4, v[12:15] offset:1024
    s_waitcnt lgkmcnt(0)
    s_barrier
    s_cmp_lg_u32 s{sW}, 0
    s_cbranch_scc1 {nx}""")
    for k in range(6): a(f"ds_read_b128 v[{24+4*k}:{27+4*k}], v5 offset:{2048+k*1024}")
    a("s_waitcnt lgkmcnt(0)")
    for w in range(3):
        for e in range(8): a(f"v_add_f32 v{D+e}, v{D+e}, v{24+8*w+e}")
    for q in range(4):
        a(f"v_cvt_pk_bf16_f32 v24, v{D+2*q}, v{D+2*q+1}")
        bf_unpack(a, 26, 27, 24); bf_unpack(a, 28, 29, 20+q)
        a("v_mul_f32 v26, v26, v28\n v_mul_f32 v27, v27, v29\n v_cvt_pk_bf16_f32 v24, v26, v27")
        bf_unpack(a, 26, 27, 24); bf_unpack(a, 28, 29, 16+q)
        a(f"v_add_f32 v26, v26, v28\n v_add_f32 v27, v27, v29\n v_cvt_pk_bf16_f32 v{32+q}, v26, v27")
    a(f"""buffer_store_dwordx4 v[32:35], v3, {SC_}, s37 offen
    {nx}:
    s_xor_b32 s38, s38, 8192
    s_add_u32 s36, s36, {4*262144}
    s_add_u32 s37, s37, {4*32*1280}
    s_add_u32 s34, s34, 4
    s_cmp_lt_u32 s34, 64
    s_cbranch_scc1 {lp}
    s_waitcnt vmcnt(0)""")
```

```python
from common import *
TK=44
def topk(a):
    K=8
    a(f"v_lshlrev_b32 v1, 4, v0\n s_mov_b32 s26, {RA}\n s_add_u32 s27, s26, 4096")
    for i in range(8): a(f"buffer_load_dwordx4 v[{K+4*i}:{K+4*i+3}], v1, {WS}, s{26+i//4} offen offset:{(i%4)*1024} sc1")
    a("v_lshlrev_b32 v2, 2, v0\n v_sub_u32 v2, 2047, v2\n s_waitcnt vmcnt(0)")
    for i in range(32):
        k = K+i
        a(f"""v_ashrrev_i32 v3, 31, v{k}
        v_or_b32 v3, 0x80000000, v3
        v_xor_b32 v{k}, v3, v{k}
        v_and_b32 v{k}, 0xffff0000, v{k}
        v_subrev_u32 v3, {(i//4)*256 + i%4}, v2
        v_or_b32 v{k}, v3, v{k}""")
    for rnd in range(8):
        a(f"v_max3_u32 v3, v{K}, v{K+1}, v{K+2}")
        for i in range(3, 31, 2): a(f"v_max3_u32 v3, v3, v{K+i}, v{K+i+1}")
        a(f"v_max_u32 v3, v3, v{K+31}")
        red8(a, 3, 4, "v_max_u32")
        a(f"""v_max_u32_dpp v3, v3, v3 row_mirror row_mask:0xf bank_mask:0xf
        v_readlane_b32 s26, v3, 0
        v_readlane_b32 s27, v3, 16
        v_readlane_b32 s28, v3, 32
        v_readlane_b32 s29, v3, 48
        s_max_u32 s26, s26, s27
        s_max_u32 s28, s28, s29
        s_max_u32 s26, s26, s28
        s_and_b32 s27, s26, 0x7ff
        s_sub_u32 s{TK+rnd}, 2047, s27
        s_not_b32 s27, s26
        s_xor_b32 s28, s26, 0x80000000
        s_bitcmp1_b32 s26, 31
        s_cselect_b32 s27, s28, s27
        s_and_b32 s{TK+8+rnd}, s27, 0xffff0000""")
        if rnd < 7:
            for i in range(0, 32, 4):
                for q in range(4): a(f"v_cmp_ne_u32 s[{60+2*q}:{61+2*q}], s26, v{K+i+q}")
                for q in range(4): a(f"v_cndmask_b32 v{K+i+q}, 0, v{K+i+q}, s[{60+2*q}:{61+2*q}]")
def xacc(a, n, base):
    a(f"v_lshlrev_b32 v1, 4, v0\n s_lshl_b32 s26, s{sW}, {10 + (n-1)}\n v_add_u32 v2, s26, v1")
    for q in range(n): a(f"ds_write_b128 v2, v[{base+4*q}:{base+4*q+3}] offset:{q*1024}")
    done = a.label("xd")
    a(f"s_waitcnt lgkmcnt(0)\n s_barrier\n s_cmp_lg_u32 s{sW}, 0\n s_cbranch_scc1 {done}")
    T=100
    for w in range(1, 4):
        for q in range(n): a(f"ds_read_b128 v[{T+4*(n*(w-1)+q)}:{T+4*(n*(w-1)+q)+3}], v1 offset:{(w*n+q)*1024}")
    a("s_waitcnt lgkmcnt(0)")
    for w in range(1, 4):
        for e in range(4*n): a(f"v_add_f32 v{base+e}, v{base+e}, v{T+4*n*(w-1)+e}")
    return done
def rbf(a, v): a(f"v_cvt_pk_bf16_f32 v{v}, v{v}, v{v}\n v_and_b32 v{v}, 0xffff0000, v{v}")
def role_mlp1(a, sT):
    srd(a, 8, 72, 640*3456); srd(a, 12, 80, 640*3456)
    a(f"v_and_b32 v3, 7, v0\n v_mov_b32 v4, s{TK}")
    for c in range(1, 8): a(f"v_mov_b32 v5, s{TK+c}\n v_cmp_eq_u32 vcc, {c}, v3\n v_cndmask_b32 v4, v4, v5, vcc")
    a(f"""v_lshrrev_b32 v5, 5, v4
    v_mul_u32_u24 v5, 40960, v5
    v_and_b32 v4, 31, v4
    v_lshl_add_u32 v5, v4, 4, v5
    v_bfe_u32 v4, v0, 4, 1
    v_lshl_add_u32 v5, v4, 9, v5
    v_lshrrev_b32 v4, 5, v0
    v_lshl_add_u32 v5, v4, 10, v5
    s_mul_i32 s26, s{sW}, 10240
    s_add_u32 s26, s26, {XN}
    v_lshrrev_b32 v4, 4, v0
    v_mul_u32_u24 v4, {8*3456}, v4
    v_and_b32 v6, 15, v0
    v_lshl_add_u32 v4, v6, 1, v4
    s_mul_i32 s27, s{sW}, {160*3456}
    s_lshl_b32 s28, s{sT}, 5
    s_add_u32 s27, s27, s28
    s_waitcnt lgkmcnt(0)""")
    A=16; B=40
    for ks in range(5):
        a(f"buffer_load_dwordx4 v[{A+4*ks}:{A+4*ks+3}], v5, {WS}, s26 offen sc1\n s_add_u32 s26, s26, 2048")
    for ks in range(5):
        for jj in range(8):
            a(f"buffer_load_ushort v{B+8*ks+jj}, v4, {SA_}, s27 offen\n buffer_load_ushort v{B+40+8*ks+jj}, v4, {SB_}, s27 offen")
            a(f"s_add_u32 s27, s27, {3456 if jj < 7 else 25*3456}")
    a("s_waitcnt vmcnt(0)")
    for m in range(2):
        for ks in range(5):
            b = B+40*m+8*ks
            for q in range(4): a(f"v_lshl_or_b32 v{b+q}, v{b+2*q+1}, 16, v{b+2*q}")
            a(f"v_mfma_f32_16x16x32_bf16 v[{8+4*m}:{11+4*m}], v[{A+4*ks}:{A+4*ks+3}], v[{b}:{b+3}], {'0' if ks == 0 else f'v[{8+4*m}:{11+4*m}]'}")
    done = xacc(a, 2, 8)
    a(f"""v_lshrrev_b32 v4, 4, v0
    v_lshlrev_b32 v4, 7, v4
    v_lshl_add_u32 v4, v6, 1, v4
    s_lshl_b32 s26, s{sT}, 8
    s_add_u32 s26, s26, {HM}
    s_mov_b32 exec_hi, 0""")
    for r in range(4):
        rbf(a, 8+r); silu(a, 8+r, 8+r, 20); rbf(a, 8+r); rbf(a, 12+r)
        a(f"v_mul_f32 v{8+r}, v{8+r}, v{12+r}\n v_cvt_pk_bf16_f32 v{8+r}, v{8+r}, v{8+r}")
        a(f"buffer_store_short v{8+r}, v4, {WS}, s26 offen offset:{32*r} sc1")
    a("s_mov_b32 exec_hi, -1\n s_waitcnt vmcnt(0)")
    return done
def role_mlp2(a, sT):
    srd(a, 8, 88, 1728*1280)
    a(f"""s_add_u32 s12, s4, {HM}
    s_addc_u32 s13, s5, 0
    s_mov_b32 s14, {108*256}
    s_mov_b32 s15, 0x00020000
    v_and_b32 v5, 7, v0
    v_lshlrev_b32 v5, 5, v5
    v_bfe_u32 v4, v0, 4, 1
    v_lshl_add_u32 v5, v4, 4, v5
    v_lshrrev_b32 v4, 5, v0
    v_lshl_add_u32 v5, v4, 8, v5
    s_mul_i32 s26, s{sW}, {14*512}
    v_add_u32 v5, s26, v5
    v_lshrrev_b32 v4, 4, v0
    v_mul_u32_u24 v4, {8*1280}, v4
    v_and_b32 v6, 15, v0
    v_lshl_add_u32 v4, v6, 1, v4
    s_mul_i32 s27, s{sW}, {14*32*1280}
    s_lshl_b32 s28, s{sT}, 5
    s_add_u32 s27, s27, s28
    v_add_u32 v4, s27, v4
    s_waitcnt lgkmcnt(0)""")
    A=16; B=72
    for ks in range(14):
        a(f"buffer_load_dwordx4 v[{A+4*ks}:{A+4*ks+3}], v5, {SB_}, 0 offen offset:{(ks%8)*512} sc1")
        if ks == 7: a("v_add_u32 v5, 4096, v5")
    for ks in range(14):
        for jj in range(8):
            a(f"buffer_load_ushort v{B+8*ks+jj}, v4, {SA_}, 0 offen offset:{(jj%3)*1280}")
            if jj % 3 == 2: a("v_add_u32 v4, 3840, v4")
        a(f"v_add_u32 v4, {26*1280}, v4")
    a("s_waitcnt vmcnt(0)")
    for ks in range(14):
        b = B+8*ks
        for q in range(4): a(f"v_lshl_or_b32 v{b+q}, v{b+2*q+1}, 16, v{b+2*q}")
        a(f"v_mfma_f32_16x16x32_bf16 v[8:11], v[{A+4*ks}:{A+4*ks+3}], v[{b}:{b+3}], {'0' if ks == 0 else 'v[8:11]'}")
    done = xacc(a, 1, 8)
    a(f"""s_mov_b32 exec_hi, 0
    v_cmp_lt_u32 vcc, 15, v0
    s_lshl_b32 s26, s{sT}, 10
    s_add_u32 s26, s26, {XN}
    s_lshl_b32 s27, s{sT}, 5
    s_add_u32 s27, s27, {GA}
    v_and_b32 v2, 7, v0
    v_lshlrev_b32 v2, 1, v2
    v_bfe_u32 v3, v0, 3, 1
    v_lshl_add_u32 v2, v3, 9, v2""")
    for r in range(4):
        a(f"""v_mov_b32 v3, s{TK+r}
        v_mov_b32 v4, s{TK+4+r}
        v_cndmask_b32 v{12+r}, v3, v4, vcc
        v_mov_b32 v3, s{TK+8+r}
        v_mov_b32 v4, s{TK+12+r}
        v_cndmask_b32 v{16+r}, v3, v4, vcc
        v_lshrrev_b32 v3, 5, v{12+r}
        v_mul_u32_u24 v3, 40960, v3
        v_and_b32 v4, 31, v{12+r}
        v_lshl_add_u32 v3, v4, 4, v3
        v_add_u32 v3, v3, v2
        buffer_load_ushort v{20+r}, v3, {WS}, s26 offen sc1
        v_mul_u32_u24 v{12+r}, 1280, v{12+r}
        v_lshl_add_u32 v{12+r}, v6, 1, v{12+r}
        v_mul_f32 v3, {f2u(-LOG2E)}, v{16+r}
        v_exp_f32 v3, v3
        v_add_f32 v3, 1.0, v3
        v_rcp_f32 v{16+r}, v3""")
        rbf(a, 16+r); rbf(a, 8+r)
        a(f"v_mul_f32 v{8+r}, v{8+r}, v{16+r}"); rbf(a, 8+r)
    a("s_waitcnt vmcnt(0)")
    for r in range(4):
        a(f"v_lshlrev_b32 v{20+r}, 16, v{20+r}\n v_add_f32 v{8+r}, v{8+r}, v{20+r}"); rbf(a, 8+r)
        silu(a, 8+r, 8+r, 3)
        a(f"v_cvt_pk_bf16_f32 v{8+r}, v{8+r}, v{8+r}\n buffer_store_short v{8+r}, v{12+r}, {WS}, s27 offen sc1")
    a("s_mov_b32 exec_hi, -1\n s_waitcnt vmcnt(0)")
    return done
```

```python
from common import *
from r_ln import flag_store
from r_mlp import rbf
CS = 128**-0.5 * LOG2E
def xmax(a, v, t, op):
    a(f"""v_mov_b32 v{t}, v{v}
    v_permlane32_swap_b32 v{t}, v{v}
    {op} v{v}, v{v}, v{t}
    v_mov_b32 v{t}, v{v}
    v_permlane16_swap_b32 v{t}, v{v}
    {op} v{v}, v{v}, v{t}""")
LASTP = [2, 1]
def role_attn(a, sT, merged):
    a(f"""v_lshlrev_b32 v1, 4, v0
    v_lshlrev_b32 v2, 3, v0
    v_bfe_u32 v3, v0, 2, 1
    v_lshlrev_b32 v3, 7, v3
    v_and_b32 v4, 3, v0
    v_lshl_add_u32 v3, v4, 2, v3
    s_and_b32 s26, s{sW}, 1
    s_lshr_b32 s27, s{sW}, 1
    s_lshl_b32 s34, s{sT}, 13
    s_lshl_b32 s40, s26, 12
    s_add_u32 s40, s40, {QX}
    s_lshl_b32 s41, s27, 12
    s_add_u32 s41, s41, {VX}
    s_lshl_b32 s35, s{sT}, 12
    s_add_u32 s35, s35, {XM}
    s_lshl_b32 s36, s{sT}, 11
    s_lshl_b32 s28, s27, 10
    s_add_u32 s36, s36, s28
    s_add_u32 s36, s36, {VM}
    s_lshl_b32 s37, s26, 17
    s_lshl_b32 s28, s{sT}, 12
    s_add_u32 s37, s37, s28
    s_lshl_b32 s28, s27, 11
    s_add_u32 s37, s37, s28
    s_add_u32 s37, s37, {OA}
    s_lshl_b32 s38, s{sT}, 7
    s_lshl_b32 s28, s{sW}, 2
    s_add_u32 s38, s38, s28
    s_add_u32 s38, s38, {F_O}
    s_lshl_b32 s39, s{sT}, 8
    s_add_u32 s39, s39, {F_PUB}
    s_mov_b32 s32, 0
    s_mov_b32 s33, 0
    s_lshl_b32 s26, s26, 4
    v_and_b32 v4, 15, v0
    v_add_u32 v4, s26, v4
    v_lshrrev_b32 v5, 4, v0
    v_lshlrev_b32 v5, 2, v5
    v_sub_u32 v4, v4, v5""")
    for k in range(8): a(f"v_cmp_le_i32 s[{60+2*k}:{61+2*k}], {(k>>2)*16 + (k&3)}, v4")
    if merged:
        a(f"""v_bfe_u32 v5, v0, 2, 1
        v_lshlrev_b32 v5, 7, v5
        v_bfe_u32 v6, v0, 3, 2
        v_min_u32 v6, 2, v6
        v_lshl_add_u32 v5, v6, 13, v5
        v_and_b32 v6, 3, v0
        v_lshl_add_u32 v5, v6, 2, v5
        s_lshl_b32 s26, s{sT}, 8
        s_add_u32 s26, s26, {F_G}""")
        spin(a, f"buffer_load_dword v6, v5, {WS}, s26 offen sc1", "v_cmp_gt_u32 vcc, 32, v6", 27, "wg")
    stamp(a, 7)
    BUF = [64, 128]; X=16; VMr=32; S=40; P=52; O=192; NEG=58; T=59
    a(f"v_mov_b32 v{NEG}, {f2u(-1e30)}\n v_mov_b32 v{P+5}, 0\n v_mov_b32 v{VMr+4}, 0")
    def qkv(b):
        a(f"s_add_u32 s26, s34, s40\n s_add_u32 s27, s34, {KX}\n s_add_u32 s28, s27, 4096\n s_add_u32 s29, s34, s41")
        for k in range(16): a(f"buffer_load_dwordx4 v[{b+4*k}:{b+4*k+3}], v1, {WS}, s{26+k//4} offen offset:{(k%4)*1024}")
        a(f"s_add_u32 s34, s34, {32*8192}")
    qkv(BUF[0])
    lp = a.label("al"); a(f"{lp}:")
    for par in range(2):
        b = BUF[par]; Q=b; K=b+16; V=b+48
        sk = a.label("sk"); lastp = a.label("lp63"); lastb = a.label("lb63")
        def mrows(sc):
            return "\n".join([f"buffer_load_dwordx4 v[{X+4*u}:{X+4*u+3}], v1, {WS}, s35 offen offset:{u*1024}{sc}" for u in range(4)] +
                             [f"buffer_load_dwordx2 v[{VMr+2*t}:{VMr+2*t+1}], v2, {WS}, s36 offen offset:{t*512}{sc}" for t in range(2)])
        stamp(a, 8 if par else 6)
        inc = f"s_add_u32 s35, s35, {32*4096}\n s_add_u32 s36, s36, {32*2048}"
        if LASTP[0] > 1 - par:
            nq = a.label("nq")
            a(f"s_cmp_lt_u32 s32, {64 - LASTP[0]}\n s_cbranch_scc1 {lastp}"); a(mrows(" sc1"))
            if par: a(f"s_cmp_eq_u32 s32, 63\n s_cbranch_scc1 {nq}")
            qkv(BUF[1-par]); a(f"{nq}:")
            spin(a, mrows(" sc1"), f"v_max3_u32 v6, v{X}, v{X+4}, v{X+8}\n v_max3_u32 v6, v6, v{X+12}, v{VMr}\n v_max_u32 v6, v6, v{VMr+2}\n v_cmp_eq_u32 vcc, -1, v6", 27, "wl", pre=True)
            a(f"{inc}\n s_branch {lastb}\n {lastp}:")
        a(f"s_cmp_gt_u32 s33, s32\n s_cbranch_scc1 {sk}")
        spin(a, f"buffer_load_dword v6, v3, {WS}, s39 offen sc1", "v_cmp_ge_u32 vcc, s32, v6", 27, "wp")
        red8(a, 6, 7, "v_min_u32")
        a(f"v_readfirstlane_b32 s33, v6\n {sk}:")
        a(mrows(""))
        a(inc)
        qkv(BUF[1-par])
        a(f"{lastb}:\n s_waitcnt vmcnt(22)")
        if par: stamp(a, 9)
        for kt in range(2):
            for u in range(4):
                d = S+4+4*kt
                a(f"v_mfma_f32_16x16x32_bf16 v[{d}:{d+3}], v[{K+16*kt+4*u}:{K+16*kt+4*u+3}], v[{Q+4*u}:{Q+4*u+3}], {'0' if u == 0 else f'v[{d}:{d+3}]'}")
        a("s_waitcnt vmcnt(16)")
        if LASTP[1]: flag_store(a, 38, "s32", 6)
        for u in range(4): a(f"v_mfma_f32_16x16x32_bf16 v[{S}:{S+3}], v[{X+4*u}:{X+4*u+3}], v[{Q+4*u}:{Q+4*u+3}], {'0' if u == 0 else f'v[{S}:{S+3}]'}")
        a(f"s_mov_b32 s26, {f2u(128**-0.5)}")
        for k in range(2, 12, 2):
            a(f"v_cvt_pk_bf16_f32 v6, v{S+k}, v{S+k+1}"); bf_unpack(a, S+k, S+k+1, 6)
            a(f"v_mul_f32 v{S+k}, s26, v{S+k}\n v_mul_f32 v{S+k+1}, s26, v{S+k+1}\n v_cvt_pk_bf16_f32 v6, v{S+k}, v{S+k+1}"); bf_unpack(a, S+k, S+k+1, 6)
        for k in range(8): a(f"v_cndmask_b32 v{S+4+k}, v{NEG}, v{S+4+k}, s[{60+2*k}:{61+2*k}]")
        a(f"""v_max3_f32 v6, v{S+4}, v{S+5}, v{S+6}
        v_max3_f32 v6, v6, v{S+7}, v{S+8}
        v_max3_f32 v6, v6, v{S+9}, v{S+10}
        v_max3_f32 v6, v6, v{S+11}, v{S+2}
        v_max_f32 v6, v6, v{S+3}""")
        xmax(a, 6, T, "v_max_f32")
        for k in range(2, 12): a(f"v_sub_f32 v{S+k}, v{S+k}, v6\n v_mul_f32 v{S+k}, {f2u(LOG2E)}, v{S+k}")
        for k in range(2, 12): a(f"v_exp_f32 v{S+k}, v{S+k}")
        a(f"v_add_f32 v6, v{S+2}, v{S+3}")
        for k in range(4, 12): a(f"v_add_f32 v6, v6, v{S+k}")
        xmax(a, 6, T, "v_add_f32")
        a("v_rcp_f32 v6, v6")
        for k in range(2, 12): a(f"v_mul_f32 v{S+k}, v{S+k}, v6")
        for q in range(4): a(f"v_cvt_pk_bf16_f32 v{P+q}, v{S+4+2*q}, v{S+5+2*q}")
        a(f"v_cvt_pk_bf16_f32 v{P+4}, v{S+2}, v{S+3}\n v_cvt_pk_bf16_f32 v{VMr+5}, v{S+2}, v{S+3}")
        for t in range(4): a(f"v_mfma_f32_16x16x32_bf16 v[{O+4*t}:{O+4*t+3}], v[{V+4*t}:{V+4*t+3}], v[{P}:{P+3}], 0")
        for t in range(4): a(f"v_mfma_f32_16x16x16_bf16 v[{O+4*t}:{O+4*t+3}], v[{VMr+(t&2)}:{VMr+(t&2)+1}], v[{VMr+4 if t & 1 else P+4}:{VMr+5 if t & 1 else P+5}], v[{O+4*t}:{O+4*t+3}]")
        for q in range(8): a(f"v_cvt_pk_bf16_f32 v{O+16+q}, v{O+2*q}, v{O+2*q+1}")
        a(f"""buffer_store_dwordx4 v[{O+16}:{O+19}], v1, {WS}, s37 offen sc1
        buffer_store_dwordx4 v[{O+20}:{O+23}], v1, {WS}, s37 offen offset:1024 sc1
        s_add_u32 s37, s37, 262144
        s_add_u32 s32, s32, 1""")
        if not LASTP[1]: a("s_waitcnt vmcnt(0)"); flag_store(a, 38, "s32", 6)
    a(f"s_cmp_lt_u32 s32, 64\n s_cbranch_scc1 {lp}\n s_waitcnt vmcnt(0)")
    if LASTP[1]: flag_store(a, 38, "s32", 6); a("s_waitcnt vmcnt(0)")

def role_wo(a, sT, merged):
    srd(a, 8, 40, 4096*1280); srd(a, 12, 0, 2621440); srd(a, 16, 96, 2621440)
    a(f"""s_mul_i32 s26, s{sT}, 52429
    s_lshr_b32 s26, s26, 20
    s_mul_i32 s27, s26, 20
    s_sub_u32 s32, s{sT}, s27
    s_and_b32 s33, s26, 1
    s_lshr_b32 s34, s26, 1
    v_lshrrev_b32 v1, 2, v0
    v_mul_u32_u24 v1, 1280, v1
    v_and_b32 v2, 3, v0
    v_lshl_add_u32 v1, v2, 4, v1
    v_lshrrev_b32 v3, 2, v0
    v_lshlrev_b32 v3, 6, v3
    v_lshl_add_u32 v3, v2, 4, v3
    s_mul_i32 s27, s{sW}, 40960
    v_add_u32 v3, s27, v3
    s_mul_i32 s26, s{sW}, {1024*1280}
    s_lshl_b32 s28, s32, 6
    s_add_u32 s26, s26, s28
    s_waitcnt lgkmcnt(0)""")
    for rnd in range(2):
        a("s_mov_b32 m0, s27")
        for k in range(32):
            a(f"buffer_load_dwordx4 v1, {SA_}, s26 offen lds\n s_add_u32 s26, s26, {16*1280}\n s_add_u32 m0, m0, 1024")
        for k in range(32):
            i = rnd*16 + k//2; mh = k % 2
            a(f"s_waitcnt vmcnt({31-k})")
            for t in range(2): a(f"ds_read_b64_tr_b16 a[{8*i+4*t+2*mh}:{8*i+4*t+2*mh+1}], v3 offset:{k*1024+t*8}")
        a("s_waitcnt lgkmcnt(0)")
    a("s_barrier")
    if merged:
        a("v_mov_b32 v5, 0")
        spin(a, f"buffer_load_dword v6, v5, {DBG}, 0 offen offset:{D_M2} sc1", "v_cmp_gt_u32 vcc, 40, v6", 27, "wm2")
        stamp(a, 7)
    a(f"""v_lshlrev_b32 v1, 4, v0
    v_bfe_u32 v2, v0, 1, 3
    v_lshlrev_b32 v2, 7, v2
    v_and_b32 v3, 1, v0
    v_lshl_add_u32 v2, v3, 3, v2
    s_lshl_b32 s35, s{sW}, 10
    s_lshl_b32 s26, s33, 2
    s_add_u32 s35, s35, s26
    s_add_u32 s35, s35, {F_O}
    s_lshl_b32 s36, s34, 18
    s_lshl_b32 s26, s33, 17
    s_add_u32 s36, s36, s26
    s_lshl_b32 s26, s{sW}, 15
    s_add_u32 s36, s36, s26
    s_add_u32 s36, s36, {OA}
    v_and_b32 v3, 15, v0
    v_mul_u32_u24 v3, 1280, v3
    v_lshrrev_b32 v4, 4, v0
    v_lshl_add_u32 v3, v4, 4, v3
    s_lshl_b32 s37, s34, 1
    s_add_u32 s37, s37, s33
    s_mul_i32 s37, s37, {16*1280}
    s_lshl_b32 s26, s32, 6
    s_add_u32 s37, s37, s26
    s_mov_b32 s38, 0
    s_lshl_b32 s39, s{sW}, 11""")
    lp = a.label("wl"); a(f"{lp}:")
    spin(a, f"buffer_load_dword v6, v2, {WS}, s35 offen sc1", "v_cmp_ge_u32 vcc, s34, v6", 27, "wo")
    B=64; D=8; stamp(a, 8)
    a(f"s_add_u32 s27, s37, {GA}\n buffer_load_dwordx4 v[16:19], v3, {SB_}, s37 offen\n buffer_load_dwordx4 v[20:23], v3, {WS}, s27 offen\n s_mov_b32 s26, s36")
    for i in range(32):
        a(f"buffer_load_dwordx4 v[{B+4*i}:{B+4*i+3}], v1, {WS}, s26 offen offset:{(i%4)*1024}")
        if i % 4 == 3: a("s_add_u32 s26, s26, 4096")
    for i in range(32):
        a(f"s_waitcnt vmcnt({31-i})")
        for t in range(2): a(f"v_mfma_f32_16x16x32_bf16 v[{D+4*t}:{D+4*t+3}], a[{8*i+4*t}:{8*i+4*t+3}], v[{B+4*i}:{B+4*i+3}], {'0' if i == 0 else f'v[{D+4*t}:{D+4*t+3}]'}")
    nx = a.label("nx"); stamp(a, 9)
    a(f"""s_add_u32 s26, s38, s39
    v_add_u32 v4, s26, v1
    v_add_u32 v5, s38, v1
    ds_write_b128 v4, v[8:11]
    ds_write_b128 v4, v[12:15] offset:1024
    s_waitcnt lgkmcnt(0)
    s_barrier
    s_cmp_lg_u32 s{sW}, 0
    s_cbranch_scc1 {nx}""")
    for k in range(6): a(f"ds_read_b128 v[{24+4*k}:{27+4*k}], v5 offset:{2048+k*1024}")
    a("s_waitcnt lgkmcnt(0)")
    for w in range(3):
        for e in range(8): a(f"v_add_f32 v{D+e}, v{D+e}, v{24+8*w+e}")
    for q in range(4):
        a(f"v_cvt_pk_bf16_f32 v24, v{D+2*q}, v{D+2*q+1}")
        bf_unpack(a, 26, 27, 24); bf_unpack(a, 28, 29, 20+q)
        a("v_mul_f32 v26, v26, v28\n v_mul_f32 v27, v27, v29\n v_cvt_pk_bf16_f32 v24, v26, v27")
        bf_unpack(a, 26, 27, 24); bf_unpack(a, 28, 29, 16+q)
        a(f"v_add_f32 v26, v26, v28\n v_add_f32 v27, v27, v29\n v_cvt_pk_bf16_f32 v{32+q}, v26, v27")
    a(f"""buffer_store_dwordx4 v[32:35], v3, {SC_}, s37 offen
    {nx}:
    s_xor_b32 s38, s38, 8192
    s_add_u32 s36, s36, {4*262144}
    s_add_u32 s37, s37, {4*32*1280}
    s_add_u32 s34, s34, 4
    s_cmp_lt_u32 s34, 64
    s_cbranch_scc1 {lp}
    s_waitcnt vmcnt(0)""")
```

```python
from common import *
from r_ln import flag_store
from r_mlp import rbf
CS = 128**-0.5 * LOG2E
def xmax(a, v, t, op):
    a(f"""v_mov_b32 v{t}, v{v}
    v_permlane32_swap_b32 v{t}, v{v}
    {op} v{v}, v{v}, v{t}
    v_mov_b32 v{t}, v{v}
    v_permlane16_swap_b32 v{t}, v{v}
    {op} v{v}, v{v}, v{t}""")
LASTP = [1, 1, 1]
def role_attn(a, sT, merged):
    a(f"""v_lshlrev_b32 v1, 4, v0
    v_lshlrev_b32 v2, 3, v0
    v_bfe_u32 v3, v0, 2, 1
    v_lshlrev_b32 v3, 7, v3
    v_and_b32 v4, 3, v0
    v_lshl_add_u32 v3, v4, 2, v3
    s_and_b32 s26, s{sW}, 1
    s_lshr_b32 s27, s{sW}, 1
    s_lshl_b32 s34, s{sT}, 13
    s_lshl_b32 s40, s26, 12
    s_add_u32 s40, s40, {QX}
    s_lshl_b32 s41, s27, 12
    s_add_u32 s41, s41, {VX}
    s_lshl_b32 s35, s{sT}, 12
    s_add_u32 s35, s35, {XM}
    s_lshl_b32 s36, s{sT}, 11
    s_lshl_b32 s28, s27, 10
    s_add_u32 s36, s36, s28
    s_add_u32 s36, s36, {VM}
    s_lshl_b32 s37, s26, 17
    s_lshl_b32 s28, s{sT}, 12
    s_add_u32 s37, s37, s28
    s_lshl_b32 s28, s27, 11
    s_add_u32 s37, s37, s28
    s_add_u32 s37, s37, {OA}
    s_lshl_b32 s38, s{sT}, 7
    s_lshl_b32 s28, s{sW}, 2
    s_add_u32 s38, s38, s28
    s_add_u32 s38, s38, {F_O}
    s_lshl_b32 s39, s{sT}, 8
    s_add_u32 s39, s39, {F_PUB}
    s_mov_b32 s32, 0
    s_mov_b32 s33, 0
    s_lshl_b32 s26, s26, 4
    v_and_b32 v4, 15, v0
    v_add_u32 v4, s26, v4
    v_lshrrev_b32 v5, 4, v0
    v_lshlrev_b32 v5, 2, v5
    v_sub_u32 v4, v4, v5""")
    for k in range(8): a(f"v_cmp_le_i32 s[{60+2*k}:{61+2*k}], {(k>>2)*16 + (k&3)}, v4")
    if merged:
        a(f"""v_bfe_u32 v5, v0, 2, 1
        v_lshlrev_b32 v5, 7, v5
        v_bfe_u32 v6, v0, 3, 2
        v_min_u32 v6, 2, v6
        v_lshl_add_u32 v5, v6, 13, v5
        v_and_b32 v6, 3, v0
        v_lshl_add_u32 v5, v6, 2, v5
        s_lshl_b32 s26, s{sT}, 8
        s_add_u32 s26, s26, {F_G}""")
        spin(a, f"buffer_load_dword v6, v5, {WS}, s26 offen sc1", "v_cmp_gt_u32 vcc, 32, v6", 27, "wg")
    stamp(a, 7)
    BUF = [64, 128]; X=16; VMr=32; S=40; P=52; O=192; NEG=58; T=59
    a(f"v_mov_b32 v{NEG}, {f2u(-1e30)}\n v_mov_b32 v{P+5}, 0\n v_mov_b32 v{VMr+4}, 0")
    def qkv(b):
        a(f"s_add_u32 s26, s34, s40\n s_add_u32 s27, s34, {KX}\n s_add_u32 s28, s27, 4096\n s_add_u32 s29, s34, s41")
        for k in range(16): a(f"buffer_load_dwordx4 v[{b+4*k}:{b+4*k+3}], v1, {WS}, s{26+k//4} offen offset:{(k%4)*1024}")
        a(f"s_add_u32 s34, s34, {32*8192}")
    qkv(BUF[0])
    a(f"s_mov_b32 s44, {f2u(128**-0.5)}\n s_mov_b32 s45, s44\n s_mov_b32 s46, {f2u(LOG2E)}\n s_mov_b32 s47, s46\n s_waitcnt vmcnt(0)")
    lp = a.label("al"); a(f"{lp}:")
    for par in range(2):
        b = BUF[par]; Q=b; K=b+16; V=b+48
        sk = a.label("sk"); lastp = a.label("lp63"); lastb = a.label("lb63")
        def mrows(sc):
            return "\n".join([f"buffer_load_dwordx4 v[{X+4*u}:{X+4*u+3}], v1, {WS}, s35 offen offset:{u*1024}{sc}" for u in range(4)] +
                             [f"buffer_load_dwordx2 v[{VMr+2*t}:{VMr+2*t+1}], v2, {WS}, s36 offen offset:{t*512}{sc}" for t in range(2)])
        stamp(a, 8 if par else 6)
        def rnd(ks):
            for st in range(2):
                for n, k in enumerate(ks): a(f"v_cvt_pk_bf16_f32 v{8+n}, v{S+k}, v{S+k+1}")
                for n, k in enumerate(ks): bf_unpack(a, S+k, S+k+1, 8+n)
                if st == 0:
                    for k in ks: a(f"v_pk_mul_f32 v[{S+k}:{S+k+1}], v[{S+k}:{S+k+1}], s[44:45]")
        def local(n):
            a(f"s_waitcnt vmcnt({n})")
            for u in range(4):
                for kt in range(2):
                    d = S+4+4*kt
                    a(f"v_mfma_f32_16x16x32_bf16 v[{d}:{d+3}], v[{K+16*kt+4*u}:{K+16*kt+4*u+3}], v[{Q+4*u}:{Q+4*u+3}], {'0' if u == 0 else f'v[{d}:{d+3}]'}")
            rnd([4, 6, 8, 10])
            for k in range(8): a(f"v_cndmask_b32 v{S+4+k}, v{NEG}, v{S+4+k}, s[{60+2*k}:{61+2*k}]")
            a(f"""v_max3_f32 v13, v{S+4}, v{S+5}, v{S+6}
            v_max3_f32 v14, v{S+7}, v{S+8}, v{S+9}
            v_max3_f32 v13, v13, v{S+10}, v{S+11}
            v_max_f32 v13, v13, v14""")
        inc = f"s_add_u32 s35, s35, {32*4096}\n s_add_u32 s36, s36, {32*2048}"
        if LASTP[0] > 1 - par:
            nq = a.label("nq")
            a(f"s_cmp_lt_u32 s32, {64 - LASTP[0]}\n s_cbranch_scc1 {lastp}"); a(mrows(" sc1"))
            if par: a(f"s_cmp_eq_u32 s32, 63\n s_cbranch_scc1 {nq}")
            qkv(BUF[1-par]); a(f"{nq}:"); local(9)
            spin(a, mrows(" sc1"), f"v_max3_u32 v6, v{X}, v{X+4}, v{X+8}\n v_max3_u32 v6, v6, v{X+12}, v{VMr}\n v_max_u32 v6, v6, v{VMr+2}\n v_cmp_eq_u32 vcc, -1, v6", 27, "wl", pre=True)
            a(f"{inc}\n s_branch {lastb}\n {lastp}:")
        a(f"s_cmp_gt_u32 s33, s32\n s_cbranch_scc1 {sk}")
        spin(a, f"buffer_load_dword v6, v3, {WS}, s39 offen sc1", "v_cmp_ge_u32 vcc, s32, v6", 27, "wp")
        red8(a, 6, 7, "v_min_u32")
        a(f"v_readfirstlane_b32 s33, v6\n {sk}:")
        a(mrows(""))
        a(inc)
        qkv(BUF[1-par])
        local(25); a(f"{lastb}:\n s_waitcnt vmcnt(16)")
        if par: stamp(a, 9)
        for u in range(4): a(f"v_mfma_f32_16x16x32_bf16 v[{S}:{S+3}], v[{X+4*u}:{X+4*u+3}], v[{Q+4*u}:{Q+4*u+3}], {'0' if u == 0 else f'v[{S}:{S+3}]'}")
        if LASTP[1]: flag_store(a, 38, "s32", 6)
        rnd([2])
        a(f"v_max3_f32 v6, v13, v{S+2}, v{S+3}")
        xmax(a, 6, T, "v_max_f32")
        for k in range(2, 12, 2): a(f"v_pk_add_f32 v[{S+k}:{S+k+1}], v[{S+k}:{S+k+1}], v[6:7] op_sel_hi:[1,0] neg_lo:[0,1] neg_hi:[0,1]")
        for k in range(2, 12, 2): a(f"v_pk_mul_f32 v[{S+k}:{S+k+1}], v[{S+k}:{S+k+1}], s[46:47]")
        for k in range(2, 12): a(f"v_exp_f32 v{S+k}, v{S+k}")
        a(f"""v_pk_add_f32 v[8:9], v[{S+2}:{S+3}], v[{S+4}:{S+5}]
        v_pk_add_f32 v[10:11], v[{S+6}:{S+7}], v[{S+8}:{S+9}]
        v_pk_add_f32 v[8:9], v[8:9], v[{S+10}:{S+11}]
        v_pk_add_f32 v[8:9], v[8:9], v[10:11]
        v_add_f32 v6, v8, v9""")
        xmax(a, 6, T, "v_add_f32")
        a("v_rcp_f32 v6, v6\n s_nop 0")
        for k in range(2, 12, 2): a(f"v_pk_mul_f32 v[{S+k}:{S+k+1}], v[{S+k}:{S+k+1}], v[6:7] op_sel_hi:[1,0]")
        for q in range(4): a(f"v_cvt_pk_bf16_f32 v{P+q}, v{S+4+2*q}, v{S+5+2*q}")
        a(f"v_cvt_pk_bf16_f32 v{P+4}, v{S+2}, v{S+3}\n v_cvt_pk_bf16_f32 v{VMr+5}, v{S+2}, v{S+3}")
        for t in range(4): a(f"v_mfma_f32_16x16x32_bf16 v[{O+4*t}:{O+4*t+3}], v[{V+4*t}:{V+4*t+3}], v[{P}:{P+3}], 0")
        for t in range(4): a(f"v_mfma_f32_16x16x16_bf16 v[{O+4*t}:{O+4*t+3}], v[{VMr+(t&2)}:{VMr+(t&2)+1}], v[{VMr+4 if t & 1 else P+4}:{VMr+5 if t & 1 else P+5}], v[{O+4*t}:{O+4*t+3}]")
        for q in range(8): a(f"v_cvt_pk_bf16_f32 v{O+16+q}, v{O+2*q}, v{O+2*q+1}")
        a(f"""buffer_store_dwordx4 v[{O+16}:{O+19}], v1, {WS}, s37 offen sc1
        buffer_store_dwordx4 v[{O+20}:{O+23}], v1, {WS}, s37 offen offset:1024 sc1
        s_add_u32 s37, s37, 262144
        s_add_u32 s32, s32, 1""")
        if not LASTP[1]: a("s_waitcnt vmcnt(0)"); flag_store(a, 38, "s32", 6)
    a(f"s_cmp_lt_u32 s32, 64\n s_cbranch_scc1 {lp}\n s_waitcnt vmcnt(0)")
    if LASTP[1]: flag_store(a, 38, "s32", 6); a("s_waitcnt vmcnt(0)")

def role_wo(a, sT, merged):
    srd(a, 8, 40, 4096*1280); srd(a, 12, 0, 2621440); srd(a, 16, 96, 2621440)
    a(f"""s_mul_i32 s26, s{sT}, 52429
    s_lshr_b32 s26, s26, 20
    s_mul_i32 s27, s26, 20
    s_sub_u32 s32, s{sT}, s27
    s_and_b32 s33, s26, 1
    s_lshr_b32 s34, s26, 1
    v_lshrrev_b32 v1, 2, v0
    v_mul_u32_u24 v1, 1280, v1
    v_and_b32 v2, 3, v0
    v_lshl_add_u32 v1, v2, 4, v1
    v_lshrrev_b32 v3, 2, v0
    v_lshlrev_b32 v3, 6, v3
    v_lshl_add_u32 v3, v2, 4, v3
    s_mul_i32 s27, s{sW}, 40960
    v_add_u32 v3, s27, v3
    s_mul_i32 s26, s{sW}, {1024*1280}
    s_lshl_b32 s28, s32, 6
    s_add_u32 s26, s26, s28
    s_waitcnt lgkmcnt(0)""")
    for rnd in range(2):
        a("s_mov_b32 m0, s27")
        for k in range(32):
            a(f"buffer_load_dwordx4 v1, {SA_}, s26 offen lds\n s_add_u32 s26, s26, {16*1280}\n s_add_u32 m0, m0, 1024")
        for k in range(32):
            i = rnd*16 + k//2; mh = k % 2
            a(f"s_waitcnt vmcnt({31-k})")
            for t in range(2): a(f"ds_read_b64_tr_b16 a[{8*i+4*t+2*mh}:{8*i+4*t+2*mh+1}], v3 offset:{k*1024+t*8}")
        a("s_waitcnt lgkmcnt(0)")
    a("s_barrier")
    if merged:
        a("v_mov_b32 v5, 0")
        spin(a, f"buffer_load_dword v6, v5, {DBG}, 0 offen offset:{D_M2} sc1", "v_cmp_gt_u32 vcc, 40, v6", 27, "wm2")
        stamp(a, 7)
    a(f"""v_lshlrev_b32 v1, 4, v0
    v_bfe_u32 v2, v0, 1, 3
    v_lshlrev_b32 v2, 7, v2
    v_and_b32 v3, 1, v0
    v_lshl_add_u32 v2, v3, 3, v2
    s_lshl_b32 s35, s{sW}, 10
    s_lshl_b32 s26, s33, 2
    s_add_u32 s35, s35, s26
    s_add_u32 s35, s35, {F_O}
    s_lshl_b32 s36, s34, 18
    s_lshl_b32 s26, s33, 17
    s_add_u32 s36, s36, s26
    s_lshl_b32 s26, s{sW}, 15
    s_add_u32 s36, s36, s26
    s_add_u32 s36, s36, {OA}
    v_and_b32 v3, 15, v0
    v_mul_u32_u24 v3, 1280, v3
    v_lshrrev_b32 v4, 4, v0
    v_lshl_add_u32 v3, v4, 4, v3
    s_lshl_b32 s37, s34, 1
    s_add_u32 s37, s37, s33
    s_mul_i32 s37, s37, {16*1280}
    s_lshl_b32 s26, s32, 6
    s_add_u32 s37, s37, s26
    s_mov_b32 s38, 0
    s_lshl_b32 s39, s{sW}, 11""")
    B=64; D=8; AC=160; SP = LASTP[2]; NS = 4 if SP == 1 else 2; TK = 16 // NS
    def seg(last):
        spin(a, f"buffer_load_dword v6, v2, {WS}, s35 offen sc1", "v_cmp_ge_u32 vcc, s34, v6", 27, "wo"); stamp(a, 8)
        a(f"s_add_u32 s27, s37, {GA}\n buffer_load_dwordx4 v[16:19], v3, {SB_}, s37 offen\n buffer_load_dwordx4 v[20:23], v3, {WS}, s27 offen\n s_mov_b32 s26, s36")
        def mf(d, i, t, b, first): a(f"v_mfma_f32_16x16x32_bf16 v[{d}:{d+3}], a[{8*i+4*t}:{8*i+4*t+3}], v[{b}:{b+3}], {'0' if first else f'v[{d}:{d+3}]'}")
        if not last:
            for i in range(32):
                a(f"buffer_load_dwordx4 v[{B+4*i}:{B+4*i+3}], v1, {WS}, s26 offen offset:{(i%4)*1024}")
                if i % 4 == 3: a("s_add_u32 s26, s26, 4096")
            for i in range(32):
                a(f"s_waitcnt vmcnt({31-i})")
                for t in range(2): mf(D+4*t, i, t, B+4*i, i == 0)
        else:
            for m in range(32//NS): a(f"buffer_load_dwordx4 v[{B+4*m}:{B+4*m+3}], v7, {WS}, s26 offen\n s_add_u32 s26, s26, {1024*NS}")
            for m in range(32//NS):
                a(f"s_waitcnt vmcnt({32//NS-1-m})")
                for j in range(NS):
                    for t in range(2): mf((D if j == 0 else AC+8*j)+4*t, NS*m+j, t, B+4*m, m == 0)
            a("s_nop 7\n s_nop 1")
            for j in range(1, NS):
                for e in range(8): a(f"v_add_f32_dpp v{D+e}, v{AC+8*j+e}, v{D+e} row_shl:{TK*j} row_mask:0xf bank_mask:0xf")
        nx = a.label("nx"); stamp(a, 9)
        a(f"""s_add_u32 s26, s38, s39
        v_add_u32 v4, s26, v1
        v_add_u32 v5, s38, v1
        ds_write_b128 v4, v[8:11]
        ds_write_b128 v4, v[12:15] offset:1024
        s_waitcnt lgkmcnt(0)
        s_barrier
        s_cmp_lg_u32 s{sW}, 0
        s_cbranch_scc1 {nx}""")
        for k in range(6): a(f"ds_read_b128 v[{24+4*k}:{27+4*k}], v5 offset:{2048+k*1024}")
        a("s_waitcnt lgkmcnt(0)")
        for w in range(3):
            for e in range(8): a(f"v_add_f32 v{D+e}, v{D+e}, v{24+8*w+e}")
        for q in range(4): a(f"v_cvt_pk_bf16_f32 v{24+q}, v{D+2*q}, v{D+2*q+1}")
        for src, op in ((20, "v_pk_mul_f32"), (16, "v_pk_add_f32")):
            for q in range(4): bf_unpack(a, 36+2*q, 37+2*q, 24+q); bf_unpack(a, 44+2*q, 45+2*q, src+q)
            for q in range(4): a(f"{op} v[{36+2*q}:{37+2*q}], v[{36+2*q}:{37+2*q}], v[{44+2*q}:{45+2*q}]")
            for q in range(4): a(f"v_cvt_pk_bf16_f32 v{24+q}, v{36+2*q}, v{37+2*q}")
        if last: a(f"s_mov_b32 s26, {hex(0x10001*((1 << TK) - 1))}\n s_mov_b32 s27, s26\n s_mov_b64 exec, s[26:27]")
        a(f"buffer_store_dwordx4 v[24:27], v3, {SC_}, s37 offen")
        if last: a("s_mov_b64 exec, -1")
        a(f"{nx}:")
    if SP: a(f"s_lshr_b32 s26, s34, {0 if NS == 4 else 1}\n s_mul_i32 s40, s26, {16*TK}\n s_mul_i32 s41, s26, {TK*1280}")
    lp = a.label("wl"); a(f"{lp}:"); seg(False)
    a(f"""s_xor_b32 s38, s38, 8192
    s_add_u32 s36, s36, {4*262144}
    s_add_u32 s37, s37, {4*32*1280}
    s_add_u32 s34, s34, 4
    s_cmp_lt_u32 s34, {63 if SP else 64}
    s_cbranch_scc1 {lp}""")
    if SP:
        dn = a.label("wdn")
        if NS == 2: a(f"s_bitcmp1_b32 s34, 0\n s_cbranch_scc0 {dn}")
        a(f"""s_sub_u32 s26, s34, 63
        s_lshl_b32 s27, s26, 18
        s_sub_u32 s36, s36, s27
        s_mul_i32 s26, s26, {32*1280}
        s_sub_u32 s37, s37, s26
        s_add_u32 s36, s36, s40
        s_add_u32 s37, s37, s41
        s_mov_b32 s34, 63
        v_bfe_u32 v7, v1, {6 if NS == 4 else 7}, {NS // 2}
        v_lshlrev_b32 v7, 10, v7
        v_and_b32 v4, {hex(0x300 + 16*(TK - 1))}, v1
        v_or_b32 v7, v7, v4""")
        seg(True); a(f"{dn}:")
    a("s_waitcnt vmcnt(0)")
```

```python
import sys
from common import *
import hz, common
from r_ln import *; from r_gemm import *; from r_mlp import *; from r_attn import *; import r_chain as rc; import r_chain2 as rc2
NAME = "recurrent_scan__memory_aug_recurrent_mem_tr__moe_arch_mod__prompt"
def chain(a, merged, cfg):
    rc.chain_prologue(a, merged)
    if cfg.get("ponly"): a(f"s_branch L_exit_{a.kn}")
    g = a.label("gen")
    a(f"s_cmp_eq_u32 s76, 2\n s_cbranch_scc1 {g}")
    for gen in (False, True):
        if gen: a(f"{g}:")
        if gen and cfg.get("nogen"): a(f"s_branch L_exit_{a.kn}"); continue
        rc2.chain_loop(a, gen, cfg)
        a(f"s_branch L_exit_{a.kn}")
def count(a, off):
    a(f"v_mov_b32 v4, 0\n v_mov_b32 v5, 1\n s_mov_b64 exec, 1\n buffer_atomic_add v5, v4, {DBG}, 0 offen offset:{off} sc1\n s_mov_b64 exec, -1")
def wait_cnt(a, off, val, nm):
    a("v_mov_b32 v5, 0")
    spin(a, f"buffer_load_dword v6, v5, {DBG}, 0 offen offset:{off} sc1", f"v_cmp_gt_u32 vcc, {val}, v6", 27, nm)
def merged(cfg):
    a = Asm(); a.kn = NAME + "_kernel"; a.stamp_on = cfg.get("stamp")
    prologue(a, 256); stamp(a, 0)
    if a.stamp_on: a("s_getreg_b32 s80, hwreg(HW_REG_HW_ID)")
    dsp = a.label("dsp"); wk = a.label("wk"); gen = f"L_gen_{a.kn}"
    a(f"""s_getreg_b32 s73, hwreg(HW_REG_XCC_ID)
    s_and_b32 s73, s73, 7
    s_lshr_b32 s33, s2, 3
    s_lshl_b32 s{sJ}, s73, 5
    s_add_u32 s{sJ}, s{sJ}, s33
    s_mov_b32 s76, 1
    s_mov_b32 s77, 0
    s_lshl_b32 s26, s2, 8
    s_min_u32 s26, s26, {(NFL-2)*128}
    s_add_u32 s26, s26, {FL}
    v_lshlrev_b32 v1, 2, v0
    v_mov_b32 v2, 0
    s_cmp_lg_u32 s{sW}, 0
    s_cbranch_scc1 {dsp}
    buffer_store_dword v2, v1, {WS}, s26 offen sc1
    {dsp}:
    s_mov_b32 s3, s{sJ}
    s_lshr_b32 s32, s{sJ}, 5
    s_and_b32 s33, s{sJ}, 31
    s_cmp_ge_u32 s{sJ}, 64
    s_cbranch_scc1 {wk}""")
    chain(a, True, cfg)
    a(f"{wk}:\n s_sub_u32 s{sJ}, s{sJ}, 64\n s_waitcnt vmcnt(0)"); arrive(a)
    gemm_ids(a)
    po = cfg.get("ponly")
    if po == 1: a(f"s_branch L_exit_{a.kn}")
    if po == 2: a(f"s_cmp_eq_u32 s32, 2\n s_cbranch_scc1 L_exit_{a.kn}")
    nl = a.label("nl")
    a(f"s_cmp_lg_u32 s32, 2\n s_cbranch_scc1 {nl}\n s_lshl_b32 s35, s34, 5\n s_add_u32 s35, s35, s33")
    P, X = role_ln(a, 35)
    verify(a, 4); flag_store(a, 29, "1"); stamp(a, 2)
    role_ln2(a, P, X); a("s_waitcnt vmcnt(0)"); flag_store(a, 29, "2")
    if cfg.get("qd"): wait_cnt(a, D_WL, cfg["qd"], "wwl")
    n2 = a.label("n2"); a(f"s_branch {n2}\n {nl}:")
    for i, ko in enumerate(cfg.get("pf", [])):
        if i == 0: a(f"s_lshl_b32 s26, s34, 1\n s_add_u32 s26, s26, s32\n s_lshl_b32 s26, s26, 5\n s_add_u32 s26, s26, s33\n s_lshl_b32 s26, s26, 2\n s_add_u32 s26, s26, s{sW}\n s_mul_i32 s30, s26, 10240\n s_add_u32 s31, s30, 4096\n s_add_u32 s35, s30, 6144\n v_lshlrev_b32 v1, 6, v0")
        srd(a, 8, ko, 640*8192); a("s_waitcnt lgkmcnt(0)")
        for r in (30, 31, 35): a(f"buffer_load_dword v10, v1, s[8:11], s{r} offen")
    if cfg.get("xd") == 1: verify(a, 4); wait_cnt(a, D_WL, 64, "wwx")
    a(f"{n2}:")
    gemm_wload(a); gemm_wread(a); stamp(a, 3)
    if po: a(f"s_branch L_exit_{a.kn}")
    verify(a, 4); wait_ln(a, 1)
    if cfg.get("xd") == 2: wait_cnt(a, D_WL, 64, "wwy")
    stamp(a, 4); gemm_main(a); stamp(a, 5)
    at = a.label("at"); wo = a.label("wo"); m2 = a.label("m2")
    a(f"s_cmp_ge_u32 s{sJ}, 160\n s_cbranch_scc1 {at}\n s_cmp_ge_u32 s{sJ}, 148\n s_cbranch_scc1 {wo}")
    wait_ln(a, 2); topk(a)
    a(f"s_cmp_ge_u32 s{sJ}, 108\n s_cbranch_scc1 {m2}")
    d = role_mlp1(a, sJ); count(a, D_M1); a(f"{d}:\n s_branch {wo}\n {m2}:\n s_sub_u32 s35, s{sJ}, 108")
    wait_cnt(a, D_M1, hex(108), "wm1")
    d = role_mlp2(a, 35); count(a, D_M2); a(f"{d}:\n {wo}:"); stamp(a, 6)
    role_wo(a, sJ, True)
    a(f"s_branch L_exit_{a.kn}\n {at}:\n s_sub_u32 s42, s{sJ}, 160")
    role_attn(a, 42, True)
    a(f"s_branch L_exit_{a.kn}")
    nw = a.label("gw")
    a(f"""{gen}:
    s_waitcnt vmcnt(0) lgkmcnt(0)
    s_barrier
    v_mov_b32 v1, 0
    s_cmp_lg_u32 s{sW}, 0
    s_cbranch_scc1 {nw}
    s_mov_b64 exec, 1
    v_mov_b32 v2, 1
    buffer_atomic_add v2, v1, {DBG}, 0 offen offset:{D_GT} sc0 sc1
    s_waitcnt vmcnt(0)
    ds_write_b32 v1, v2
    s_waitcnt lgkmcnt(0)
    s_mov_b64 exec, -1
    {nw}:
    s_barrier
    ds_read_b32 v2, v1
    s_waitcnt lgkmcnt(0)
    v_readfirstlane_b32 s{sJ}, v2
    s_mov_b32 s76, 2
    s_mov_b32 s77, 3
    v_mbcnt_lo_u32_b32 v0, -1, 0
    v_mbcnt_hi_u32_b32 v0, -1, v0
    s_barrier""")
    wait_cnt(a, D_GT, hex(256), "wgt")
    a(f"s_cmp_lt_u32 s{sJ}, 256\n s_cbranch_scc1 {dsp}")
    a(f"L_exit_{a.kn}:")
    if a.stamp_on:
        nx = a.label("nst")
        a(f"s_cmp_ge_u32 s2, 256\n s_cbranch_scc1 {nx}"); stamp(a, 10)
        if cfg.get("dbgout"):
            n3 = a.label("n3"); n4 = a.label("n4")
            def mx(w, i): a(f"s_sub_u32 s27, s{78+2*i}, s78\n v_mov_b32 v2, s27\n buffer_atomic_umax v2, v1, {DBG}, 0 offen offset:{4*w} sc1")
            a(f"v_mov_b32 v1, 0\n s_mov_b64 exec, 1\n s_cmp_ge_u32 s3, 64\n s_cbranch_scc1 {n3}")
            for w, i in ((0, 2), (1, 3), (2, 4), (3, 10)): mx(w, i)
            a(f"s_memtime s[28:29]\n s_waitcnt lgkmcnt(0)\n s_sub_u32 s28, s28, s100\n s_sub_u32 s27, s98, s86\n s_cmp_lg_u32 s3, 0\n s_cbranch_scc1 {n4}")
            a(f"v_mov_b32 v2, s28\n buffer_store_dword v2, v1, {DBG}, 0 offen offset:16 sc1\n v_mov_b32 v3, s27\n buffer_store_dword v3, v1, {DBG}, 0 offen offset:20 sc1\n s_branch {n4}\n {n3}:")
            for w, i in ((8, 3), (9, 4), (10, 5), (12, 10)): mx(w, i)
            a(f"{n4}:\n s_waitcnt vmcnt(0)\n s_mov_b64 exec, -1\n s_branch {nx}")
        a(f"s_lshl_b32 s26, s3, 2\n s_add_u32 s26, s26, s{sW}\n s_lshl_b32 s26, s26, 6\n s_add_u32 s26, s26, 0x7100000\n v_mov_b32 v1, 0")
        for i in range(11): a(f"v_mov_b32 v2, s{78+2*i}\n buffer_store_dword v2, v1, {WS}, s26 offen offset:{4*i}")
        a(f"{nx}:")
    a("s_endpgm")
    lines, n = hz.fix(a.lines, tm=cfg.get("tm", True))
    lines = [l.replace(".cmt", ";") for l in lines]
    doc = """; One persistent launch, one workgroup per CU, roles from (die, slot); the guess is checked against all arrivals, else roles by ticket.
"""
    return "; @launch grid=(256,1,1) block=(256,1,1) lds=163840\n" + doc + HEADER + kernel_begin(a.kn) + "\n".join(lines) + "\n" + kernel_desc(a.kn, 512, 256)
if __name__ == "__main__":
    cfg = eval(sys.argv[2]) if len(sys.argv) > 2 else {}
    if cfg.get("forcegen"): common.FORCEGEN = True
    if cfg.get("dbgout"): common.ARR[0] = 64
    rc.PRE[0] = cfg.get("pre", 4); common.SLPN.update(cfg.get("slp", {}))
    import r_attn; r_attn.LASTP[:] = [cfg.get("lastp", 1), cfg.get("dfl", 1), cfg.get("sp", 0)]; rc.NLA[0] = r_attn.LASTP[0]
    open(sys.argv[1], "w").write(merged(cfg))
```
